```python
import torch

def _softmax(x, axis=-1):
    return torch.softmax(x, dim=axis)
def _gelu(x):
    return torch.nn.functional.gelu(x, approximate="tanh")
def _silu(x):
    return torch.nn.functional.silu(x)
def _sigmoid(x):
    return torch.sigmoid(x)
def _layernorm(x, axis=-1, eps=1e-5):
    m = x.mean(dim=axis, keepdim=True)
    v = x.var(dim=axis, keepdim=True, unbiased=False)
    return (x - m) / torch.sqrt(v + eps)
def _scatter_add(tgt, idx, src, axis=0):
    return tgt.clone().index_add_(axis, idx, src)
def _segment_sum(src, seg, n):
    out = torch.zeros((n,) + src.shape[1:], dtype=src.dtype)
    return out.index_add_(0, seg, src)
def _pad(x, pw):
    flat = tuple(v for pair in reversed(pw) for v in pair)
    return torch.nn.functional.pad(x, flat)

kernel_name = 'sequential_preLN__sliding_block__moe_arch_mod__prompt'

def setup_inputs():

    _w = (lambda a: (lambda t: t.to(torch.bfloat16) if t.is_floating_point() else t)(torch.as_tensor(a)))
    def _A_setup():
        B, S, D = 1, 2048, 512
        return {
            "x": _w((lambda *s: torch.randn(*s, dtype=torch.bfloat16) * 0.05)(B, S, D)),
            "wqkv": _w((lambda *s: torch.randn(*s, dtype=torch.bfloat16) * 0.05)(D, 3 * D)),
            "wo": _w((lambda *s: torch.randn(*s, dtype=torch.bfloat16) * 0.05)(D, D)),
        }
    _A_in = _A_setup()

    def _B_setup():
        B, S, D, F, C = 1, 2048, 512, 1792, 1
        return {
            "x": _w((lambda *s: torch.randn(*s, dtype=torch.bfloat16) * 0.05)(B, S, D)),
            "w_r": _w((lambda *s: torch.randn(*s, dtype=torch.bfloat16) * 0.05)(D)),
            "w_gate": _w((lambda *s: torch.randn(*s, dtype=torch.bfloat16) * 0.05)(D, F)),
            "w_up": _w((lambda *s: torch.randn(*s, dtype=torch.bfloat16) * 0.05)(D, F)),
            "w_down": _w((lambda *s: torch.randn(*s, dtype=torch.bfloat16) * 0.05)(F, D)),
        }
    _B_in = _B_setup()

    return {
        "A_x": _A_in["x"],
        "A_wqkv": _A_in["wqkv"],
        "A_wo": _A_in["wo"],
        "B_x": _B_in["x"],
        "B_w_r": _B_in["w_r"],
        "B_w_gate": _B_in["w_gate"],
        "B_w_up": _B_in["w_up"],
        "B_w_down": _B_in["w_down"],
    }

def reference(A_x, A_wqkv, A_wo, B_x, B_w_r, B_w_gate, B_w_up, B_w_down):
    def _A_ref(x, wqkv, wo):
        B, S, D = x.shape
        H = 32; Dh = D // H; W = 256
        qkv = (lambda x, *d: x.permute(*d))((x @ wqkv).reshape(B, S, 3, H, Dh), 2, 0, 3, 1, 4)
        q, k, v = qkv[0], qkv[1], qkv[2]
        scores = torch.einsum("bhqd,bhkd->bhqk", q, k) * (Dh ** -0.5)
        idx = torch.arange(S)
        mask = (idx[:, None] - idx[None, :] >= 0) & (idx[:, None] - idx[None, :] < W)
        scores = torch.where(mask[None, None], scores, -1e9)
        p = _softmax(scores, axis=-1)
        o = torch.einsum("bhqk,bhkd->bhqd", p, v)
        return (lambda x, *d: x.permute(*d))(o, 0, 2, 1, 3).reshape(B, S, D) @ wo

    def _B_ref(x, w_r, w_gate, w_up, w_down):
        B, S, D = x.shape
        C = 1
        r = x @ w_r
        idx = torch.argsort(-r, axis=-1)[:, :C]
        idx_e = (lambda x, n, axis: torch.repeat_interleave(x, n, dim=axis))(idx.reshape(B, C, 1), D, axis=2)
        x_sel = (lambda x, i, axis: torch.take_along_dim(x, i, dim=axis))(x, idx_e, axis=1)
        g = _silu(x_sel @ w_gate)
        u = x_sel @ w_up
        y = (g * u) @ w_down
        r_sel = _sigmoid((lambda x, i, axis: torch.take_along_dim(x, i, dim=axis))(r, idx, axis=1))
        y = y * r_sel.reshape(B, C, 1)
        b_off = (torch.arange(B) * S).reshape(B, 1)
        flat_idx = (idx + b_off).reshape(B * C)
        zero = (x * 0.0).reshape(B * S, D)
        upd = _scatter_add(zero, flat_idx, y.reshape(B * C, D), axis=0)
        return x + upd.reshape(B, S, D)

    x = A_x
    h = x + _A_ref(_layernorm(x, axis=-1), A_wqkv, A_wo)
    h2 = h + _B_ref(_layernorm(h, axis=-1), B_w_r, B_w_gate, B_w_up, B_w_down)
    return h2
```

```python
NAME = "sequential_preLN__sliding_block__moe_arch_mod__prompt_kernel"

class Asm:
    def __init__(self):
        self.L = []
        self.nlab = 0
    def __call__(self, s):
        for line in s.strip("\n").split("\n"):
            self.L.append(line.strip())
    def lab(self, p="L"):
        self.nlab += 1
        return f"{p}_{self.nlab}"
    def text(self):
        return "\n".join(self.L)

def wrap(body, grid, block, lds, nvgpr=256, accum=256, nsgpr=102):
    return f"""; @launch grid=({grid},1,1) block=({block},1,1) lds={lds}
.amdgcn_target "amdgcn-amd-amdhsa--gfx950"
.text
.globl {NAME}
.p2align 8
.type {NAME},@function
{NAME}:
{body}
s_endpgm
.section .rodata,"a"
.p2align 6
.amdhsa_kernel {NAME}
  .amdhsa_next_free_vgpr {nvgpr}
  .amdhsa_next_free_sgpr {nsgpr}
  .amdhsa_accum_offset {accum}
  .amdhsa_group_segment_fixed_size 0
  .amdhsa_kernarg_size 88
  .amdhsa_user_sgpr_count 2
  .amdhsa_user_sgpr_kernarg_segment_ptr 1
  .amdhsa_system_sgpr_workgroup_id_x 1
.end_amdhsa_kernel
"""

import re
_reg_re = re.compile(r"\b([vas])(\d+)\b|\b([vas])\[(\d+):(\d+)\]|\b(vcc|exec|m0)(_lo|_hi)?\b")
def regs_of(op):
    out = set()
    for m in _reg_re.finditer(op):
        if m.group(1): out.add((m.group(1), int(m.group(2))))
        elif m.group(3):
            for i in range(int(m.group(4)), int(m.group(5)) + 1): out.add((m.group(3), i))
        else: out.add((m.group(6), 0))
    return out
def split_ops(s):
    ops, depth, cur = [], 0, ""
    for ch in s:
        if ch == "[": depth += 1
        if ch == "]": depth -= 1
        if ch == "," and depth == 0: ops.append(cur.strip()); cur = ""
        else: cur += ch
    if cur.strip(): ops.append(cur.strip())
    return ops
TRANS = ("v_exp", "v_log", "v_rcp", "v_rsq", "v_sqrt", "v_sin", "v_cos")
class Ins:
    def __init__(self, line):
        self.line = line
        code = line.split(";")[0].strip()
        self.real = bool(code) and not code.endswith(":") and not code.startswith(".")
        self.states = 0
        if not self.real: return
        p = code.split(None, 1)
        mn = self.mn = p[0]
        rest = p[1] if len(p) > 1 else ""
        ops = split_ops(rest)
        self.states = 1
        self.kind = "other"; self.w = set(); self.r = set(); self.A = self.C = set(); self.sdata = set()
        self.dpp = ("dpp" in mn) or any(k in rest for k in ("quad_perm", "row_shr", "row_shl", "row_ror", "row_bcast", "row_mirror", "row_half_mirror", "row_newbcast", "wave_shr", "wave_shl"))
        self.opsel = ("op_sel" in rest and not mn.startswith("v_pk_")) or "dst_sel" in rest
        R = [regs_of(o) for o in ops]
        if mn == "s_nop": self.states = int(ops[0], 0) + 1
        elif mn.startswith("v_smfmac"):
            self.kind = "mfma"; self.passes = 8 if "32x32" in mn else 4
            self.w = R[0]; self.A = R[1] | R[2] | R[3]; self.C = R[0]; self.r = self.A | self.C
        elif mn.startswith("v_mfma"):
            self.kind = "mfma"; self.passes = 8 if "32x32" in mn else 4
            self.w = R[0]; self.A = R[1] | R[2]; self.C = R[3]; self.r = self.A | self.C
        elif mn.startswith("v_"):
            self.kind = "valu"
            self.trans = mn.startswith(TRANS); self.dot = mn.startswith("v_dot")
            self.perm = mn.startswith("v_permlane"); self.rl = mn.startswith(("v_readlane", "v_readfirstlane"))
            if mn == "v_nop": return
            self.w = set(R[0]); srcs = R[1:]
            if "_co_" in mn or mn.startswith("v_div_scale") or mn.startswith("v_mad_u64"): self.w |= R[1]; srcs = R[2:]
            if mn.startswith("v_cmpx"): self.w |= {("exec", 0)}
            for s in srcs: self.r |= s
            if mn.startswith(("v_fmac", "v_mac", "v_dot2c", "v_pk_fmac", "v_writelane")) or self.dpp or self.perm or self.opsel: self.r |= R[0]
            if self.perm and "swap" in mn: self.w |= R[1]
            if mn.startswith("v_cndmask") and len(ops) == 3: self.r |= {("vcc", 0)}
            if mn.startswith("v_div_fmas"): self.r |= {("vcc", 0)}
            self.dotC = R[0] if mn.startswith("v_dot2c") else (R[3] if self.dot and len(R) > 3 else set())
            self.dotAB = (R[1] | R[2]) if self.dot else set()
        elif mn.startswith(("buffer_", "global_", "flat_")):
            self.kind = "vmem"
            toks = rest.replace(",", " ").split()
            self.lds = ("lds" in toks) or ("_lds_" in mn)
            allr = set().union(*R) if R else set()
            if "load" in mn and not self.lds: self.w = R[0]; self.r = set().union(*R[1:])
            elif "atomic" in mn and "sc0" in toks and mn.startswith("global"): self.w = R[0]; self.r = set().union(*R[1:])
            else:
                self.r = allr
                if "store" in mn and ("x3" in mn or "x4" in mn): self.sdata = R[0] if mn.startswith("buffer") else R[1]
        elif mn.startswith("ds_"):
            self.kind = "ds"
            if mn.startswith(("ds_read", "ds_bpermute", "ds_permute", "ds_swizzle")) or "_rtn" in mn: self.w = R[0]; self.r = set().union(*R[1:])
            else: self.r = set().union(*R)
        elif mn.startswith("s_"):
            self.kind = "salu"
            if R and not mn.startswith(("s_cmp", "s_cbranch", "s_branch", "s_waitcnt", "s_barrier", "s_bitcmp", "s_setprio", "s_sleep")): self.w = R[0]
def need(p, c):
    n = 0
    isv = lambda S: {x for x in S if x[0] in "va"}
    iss = lambda S: {x for x in S if x[0] in ("s", "vcc")}
    if p.kind == "valu":
        wv = isv(p.w); ws = iss(p.w)
        if c.kind == "mfma" and wv & c.r: n = max(n, 3 if p.dot else 2)
        if p.dot and c.kind != "other" and c.kind != "salu":
            if c.kind == "valu" and c.mn == p.mn:
                if wv & c.dotAB: n = max(n, 3)
            elif wv & (c.r | c.w): n = max(n, 3)
        if c.kind == "valu":
            if p.trans and not c.trans and wv & c.r: n = max(n, 1)
            if (c.dpp or c.perm) and wv & c.r: n = max(n, 2)
            if c.rl and wv & c.r: n = max(n, 1)
            if p.opsel and wv & (c.r | c.w): n = max(n, 1)
            if ws & c.r: n = max(n, 4 if (c.rl or c.mn.startswith(("v_div_fmas", "v_writelane"))) else 2)
        if c.kind == "vmem" and ws & c.r: n = max(n, 5)
        if ("exec", 0) in p.w and c.kind in ("mfma", "valu"): n = max(n, 5)
    if p.kind == "mfma":
        big = 12 if p.passes == 8 else 8
        if c.kind == "mfma":
            if p.w & c.A: n = max(n, big)
            if p.w & c.C and not (p.w == c.C and p.passes == c.passes): n = max(n, big - 2)
        elif c.kind in ("valu", "vmem", "ds") and p.w & (c.r | c.w): n = max(n, big)
        if c.kind in ("valu", "vmem", "ds") and p.C & c.w: n = max(n, 7 if p.passes == 8 else 3)
    if p.kind == "salu" and ("m0", 0) in p.w and c.kind == "vmem" and c.lds: n = max(n, 1)
    if p.kind == "vmem" and p.sdata and p.sdata & c.w: n = max(n, 2 if c.kind in ("valu", "mfma") else 1)
    return n
def fix_hazards(lines, verbose=False):
    out = []; ins = []; total = 0
    for ln in lines:
        c = Ins(ln)
        if c.real and c.kind not in ("other",):
            dist = 0; req = 0
            for p in reversed(ins):
                if not p.real: continue
                if p.mn in ("s_branch", "s_endpgm", "s_setpc_b64"): break
                if p.kind != "other": req = max(req, need(p, c) - dist)
                dist += p.states
                if dist >= 14: break
            if req > 0:
                total += req
                nop = f"s_nop {req-1}"
                assert req <= 16
                out.append(nop); ins.append(Ins(nop))
        out.append(ln); ins.append(c)
    if verbose: print("; hazard nops:", total)
    return out
```

```python
import sys
from asmlib import *
OPT = dict(stamps=0, stage=9, bound=20000)
for x in sys.argv[1:]:
    k, v = x.split("="); OPT[k] = int(v, 0)
ST = OPT["stamps"]; STAGE = OPT["stage"]; BOUND = OPT["bound"]

WS_FLAGS=0x1000; WS_STATS=0x2000; WS_CAND=0x30000; WS_ROWS=0x40000; WS_ACT=0x70000
WS_KV=0x100000; WS_O=0x500000; WS_STAMP=0x800000; WS_DBG=0x900000
LDS_W=65536; LDS_KX=131072; LDS_QX=147456; LDS_NM=155648; LDS_RS=155904
LDS_OST=131072; LDS_PRE=65536; LDS_DEF=69632; LDS_RED=70656
SX, SW, SWS, SWO, SOUT, SFA, SFB = 8, 12, 16, 20, 24, 28, 32
def S4(n): return f"s[{n}:{n+3}]"
def V(n, k): return f"v[{n}:{n+k-1}]"
ONES = 0x3F803F80
a = Asm()
tail = Asm(); tail.nlab = 1000

class Cnt:
    def __init__(s, name, mx): s.ops = []; s.name = name; s.mx = mx
    def add(s, tag): s.ops.append(tag)
    def wait(s, tag):
        idx = max(i for i, t in enumerate(s.ops) if t == tag)
        n = len(s.ops) - 1 - idx
        a(f"s_waitcnt {s.name}({min(n, s.mx)})")
    def reset(s): s.ops = []

def stamp(i):
    if ST: a(f"s_memrealtime s[{72+2*i}:{73+2*i}]")
def dump_stamps(base):
    if not ST: return
    a("s_waitcnt lgkmcnt(0)")
    a("s_mov_b64 exec, -1")
    for i in range(12):
        a(f"v_writelane_b32 v4, s{72+2*i}, {i}\nv_writelane_b32 v5, s{73+2*i}, {i}")
    a(f"""
v_lshlrev_b32 v6, 3, v0
s_mul_i32 s56, s2, 192
s_add_u32 s56, s56, {WS_STAMP + base*96}
s_mov_b64 exec, 0xfff
buffer_store_dwordx2 v[4:5], v6, {S4(SWS)}, s56 offen
s_mov_b64 exec, -1
""")
def srd(n, lo, size):
    a(f"s_mov_b32 s{n}, s{lo}\ns_mov_b32 s{n+1}, s{lo+1}\ns_mov_b32 s{n+2}, {size}\ns_mov_b32 s{n+3}, 0x00020000")
def lnstats(s1, s2, m, rs, t):
    a(f"""
v_mul_f32 v{m}, 0x3b000000, v{s1}
v_mul_f32 v{s2}, 0x3b000000, v{s2}
v_fma_f32 v{s2}, -v{m}, v{m}, v{s2}
v_max_f32 v{s2}, 0, v{s2}
v_cvt_pk_bf16_f32 v{t}, v{m}, v{s2}
v_and_b32 v{s2}, 0xffff0000, v{t}
v_add_f32 v{s2}, 0x3727c5ac, v{s2}
v_lshlrev_b32 v{m}, 16, v{t}
v_cvt_pk_bf16_f32 v{s2}, v{s2}, v{s2}
v_and_b32 v{s2}, 0xffff0000, v{s2}
v_sqrt_f32 v{s2}, v{s2}
v_cvt_pk_bf16_f32 v{s2}, v{s2}, v{s2}
v_and_b32 v{s2}, 0xffff0000, v{s2}
v_rcp_f32 v{rs}, v{s2}
""")
def poll(loads, check, cnt=71):
    L = a.lab("poll"); D = a.lab("polld")
    a(f"s_movk_i32 s{cnt}, {BOUND}\n{L}:")
    loads()
    a("s_waitcnt vmcnt(0)")
    check()
    a(f"s_cbranch_vccz {D}\ns_sub_u32 s{cnt}, s{cnt}, 1\ns_cbranch_scc0 {L}\n{D}:")
def mfma32(d, A, B, C):
    c = "0" if C is None else V(C, 16)
    a(f"v_mfma_f32_32x32x16_bf16 {V(d,16)}, {V(A,4)}, {V(B,4)}, {c}")
def mfma16(d, A, B, C):
    c = "0" if C is None else V(C, 4)
    a(f"v_mfma_f32_16x16x32_bf16 {V(d,4)}, {V(A,4)}, {V(B,4)}, {c}")

a("L_start:")
if ST:
    for i in range(1, 12): a(f"s_mov_b64 s[{72+2*i}:{73+2*i}], 0")
stamp(0)
a(f"""
s_load_dwordx16 s[36:51], s[0:1], 0
s_load_dwordx2 s[52:53], s[0:1], 64
s_load_dwordx2 s[54:55], s[0:1], 80
s_cmp_ge_u32 s2, 256
s_cbranch_scc1 L_end
v_lshrrev_b32 v1, 6, v0
v_and_b32 v0, 63, v0
s_and_b32 s56, s2, 7
v_readfirstlane_b32 s3, v1
s_lshr_b32 s57, s2, 3
s_and_b32 s5, s56, 1
s_lshl_b32 s5, s5, 2
s_and_b32 s58, s57, 3
s_or_b32 s5, s5, s58
s_lshr_b32 s4, s56, 1
s_lshl_b32 s4, s4, 3
s_lshr_b32 s58, s57, 2
s_or_b32 s4, s4, s58
s_cmp_lt_u32 s3, 4
s_cbranch_scc1 L_compute
""")

vm = Cnt("vmcnt", 63); lg = Cnt("lgkmcnt", 15)
a(f"""
s_sub_u32 s3, s3, 4
v_lshrrev_b32 v1, 3, v0
v_and_b32 v2, 7, v0
v_lshrrev_b32 v3, 4, v0
v_xor_b32 v10, v2, v3
v_lshlrev_b32 v11, 10, v1
v_lshl_add_u32 v4, v10, 4, v11
v_xor_b32 v5, 64, v4
v_add_u32 v5, 8192, v5
v_and_b32 v10, 1, v3
v_lshlrev_b32 v10, 2, v10
v_xor_b32 v10, v10, v2
v_mul_u32_u24 v11, 3072, v1
v_lshl_add_u32 v6, v10, 4, v11
v_add_u32 v7, 24576, v6
s_lshl_b32 s57, s4, 16
s_lshl_b32 s60, s3, 14
s_add_u32 s57, s57, s60
s_lshl_b32 s58, s5, 7
s_mul_i32 s60, s3, {16*3072}
s_lshl_b32 s59, s60, 1
s_add_u32 s59, s59, s58
s_add_u32 s58, s58, s60
s_lshl_b32 s60, s3, 11
s_lshl_b32 s61, s3, 12
s_mov_b32 s{SX+2}, 0x200000
s_mov_b32 s{SX+3}, 0x00020000
s_mov_b32 s{SW+2}, 0x180000
s_mov_b32 s{SW+3}, 0x00020000
s_waitcnt lgkmcnt(0)
s_mov_b64 s[{SX}:{SX+1}], s[36:37]
s_mov_b64 s[{SW}:{SW+1}], s[38:39]
""")
def dX(c):
    for e in range(2):
        a(f"s_add_u32 m0, s60, {c*8192 + e*1024 - c*128}")
        a(f"buffer_load_dwordx4 v{4+e}, {S4(SX)}, s57 offen offset:{c*128} lds"); vm.add(f"X{c}")
def dW(j):
    slot = j % 5
    if j < 8:
        a(f"s_add_u32 s62, s58, {j*64*3072}")
        for si in range(2):
            for e in range(2):
                so = 1024 * (si + 1)
                a(f"s_add_u32 m0, s60, {LDS_W + slot*16384 + si*8192 + e*1024 - so}")
                a(f"buffer_load_dwordx4 v{6+e}, {S4(SW)}, s62 offen offset:{so} lds"); vm.add(f"W{j}")
    else:
        q = j - 8
        for jj in range(2):
            a(f"s_add_u32 s62, s59, {(128*q + 16*jj)*3072}")
            for e in range(2):
                a(f"s_add_u32 m0, s61, {LDS_W + slot*16384 + (2*jj+e)*1024}")
                a(f"buffer_load_dwordx4 v{6+e}, {S4(SW)}, s62 offen lds"); vm.add(f"W{j}")
def issue(lst):
    for t in lst.split():
        (dX if t[0] == "X" else dW)(int(t[1:]))
SEQ = ["X0 W0 X1 W1 X2 X3 W2", "X4 W3", "X5 X6 W4", "X7 W5", "W6", "W7 W8", "W9", "W10", "W11"]
issue(SEQ[0])
a(f"s_load_dword s6, s[54:55], 0")
srd(SWS, 54, 0x1000000)
srd(SWO, 40, 0x80000)
srd(SOUT, 52, 0x200000)
a(f"""
v_lshrrev_b32 v1, 2, v0
s_lshl_b32 s63, s3, 4
v_add_u32 v1, s63, v1
v_lshrrev_b32 v2, 1, v1
v_and_b32 v2, 1, v2
v_and_b32 v3, 3, v0
v_lshl_add_u32 v2, v2, 2, v3
v_lshlrev_b32 v3, 7, v1
v_lshl_add_u32 v8, v2, 4, v3
v_xor_b32 v9, 64, v8
v_lshlrev_b32 v14, 2, v1
v_add_u32 v14, {LDS_NM}, v14
v_mov_b32 v10, 0
v_mov_b32 v11, 0
v_mov_b32 v12, 0
v_mov_b32 v13, 0
s_mov_b32 s64, {ONES}
s_waitcnt lgkmcnt(0)
s_mul_i32 s6, s6, 0x9E3779B1
s_add_u32 s6, s6, 0x7F4A7C15
""")
def xstats(cs):
    for i, c in enumerate(cs):
        a(f"ds_read_b128 {V(16+8*i,4)}, v8 offset:{c*8192}\nds_read_b128 {V(20+8*i,4)}, v9 offset:{c*8192}")
    a("s_waitcnt lgkmcnt(0)")
    for r in range(16, 16 + 8*len(cs), 2):
        a(f"v_dot2c_f32_bf16 v10, s64, v{r}\nv_dot2c_f32_bf16 v12, v{r}, v{r}\nv_dot2c_f32_bf16 v11, s64, v{r+1}\nv_dot2c_f32_bf16 v13, v{r+1}, v{r+1}")
done_x = 0
XS = {1: [0, 1], 2: [2, 3], 3: [4], 4: [5, 6], 5: [7]}
for c in range(8):
    vm.wait(f"W{c}")
    a("s_barrier")
    if c == 0: stamp(1)
    if c == 7: stamp(2)
    issue(SEQ[c+1])
    if c in XS:
        for x in XS[c]: assert vm.ops.index(f"X{x}") < vm.ops.index(f"W{c}")
        xstats(XS[c])
    if c == 5:
        a("""
v_add_f32 v10, v10, v11
v_add_f32 v12, v12, v13
v_add_f32_dpp v10, v10, v10 quad_perm:[1,0,3,2] row_mask:0xf bank_mask:0xf
v_add_f32_dpp v12, v12, v12 quad_perm:[1,0,3,2] row_mask:0xf bank_mask:0xf
v_add_f32_dpp v10, v10, v10 quad_perm:[2,3,0,1] row_mask:0xf bank_mask:0xf
v_add_f32_dpp v12, v12, v12 quad_perm:[2,3,0,1] row_mask:0xf bank_mask:0xf
""")
        lnstats(10, 12, 11, 13, 15)
        a(f"""
v_cvt_pk_bf16_f32 v11, -v11, -v11
ds_write_b32 v14, v11
ds_write_b32 v14, v13 offset:{LDS_RS-LDS_NM}
s_waitcnt lgkmcnt(0)
""")
a(f"""
s_and_b32 s65, s5, 1
s_lshl_b32 s63, s4, 1
s_add_u32 s65, s65, s63
s_lshr_b32 s66, s5, 1
v_lshrrev_b32 v1, 4, v0
v_and_b32 v2, 15, v0
v_lshlrev_b32 v3, 2, v1
v_xor_b32 v2, v2, v3
v_lshlrev_b32 v1, 10, v1
v_lshl_add_u32 v4, v2, 4, v1
s_lshl_b32 s57, s66, 8
s_lshl_b32 s58, s3, 17
s_add_u32 s57, s57, s58
s_lshl_b32 s60, s3, 15
v_bfe_u32 v1, v0, 2, 2
v_lshrrev_b32 v2, 5, v0
v_lshl_add_u32 v2, v2, 2, v1
v_lshlrev_b32 v2, 8, v2
v_xor_b32 v1, s3, v1
v_lshl_add_u32 v2, v1, 6, v2
v_and_b32 v1, 1, v0
v_lshl_add_u32 v2, v1, 5, v2
v_and_b32 v1, 16, v0
v_add_u32 v2, v2, v1
v_and_b32 v1, 2, v0
v_lshl_add_u32 v2, v1, 2, v2
v_lshlrev_b32 v5, 4, v0
""")
for q in range(4):
    a(f"s_add_u32 s63, s3, {q}\ns_and_b32 s63, s63, 3\ns_lshl_b32 s62, s63, 15\nv_add_u32 v{8+q}, s62, v2")
    a(f"s_lshl_b32 s62, s63, 13\ns_add_u32 s62, s62, {LDS_OST}\nv_add_u32 v{12+q}, s62, v5")
a(f"""
s_lshl_b32 s62, s66, 8
s_lshl_b32 s63, s3, 6
s_add_u32 s62, s62, s63
v_lshrrev_b32 v1, 5, v0
v_lshl_add_u32 v7, v1, 5, s62
v_and_b32 v1, 31, v0
s_lshl_b32 s63, s65, 5
v_add_u32 v1, s63, v1
v_lshl_add_u32 v6, v1, 10, v7
v_sub_u32 v16, 2047, v1
""")
for j in range(8, 12):
    vm.wait(f"W{j}")
    a("s_barrier")
stamp(3)
vm.reset()
a(f"""
buffer_load_dwordx4 v[64:67], v6, {S4(SX)}, 0 offen
buffer_load_dwordx4 v[68:71], v6, {S4(SX)}, 0 offen offset:16
global_load_dwordx4 v[72:75], v7, s[44:45]
global_load_dwordx4 v[76:79], v7, s[44:45] offset:16
global_load_dwordx4 v[20:23], v5, s[44:45]
s_barrier
""")
stamp(4)
if STAGE >= 3:
    for i in range(32):
        a(f"s_add_u32 m0, s60, {i*1024}\ns_add_u32 s62, s57, {i*4096}")
        a(f"buffer_load_dwordx4 v4, {S4(SWO)}, s62 offen lds")
    a("s_waitcnt vmcnt(32)")
    for j in range(8):
        a(f"v_lshlrev_b32 v{80+2*j}, 16, v{64+j}\nv_and_b32 v{81+2*j}, 0xffff0000, v{64+j}")
    a("v_mov_b32 v17, 0")
    for j in range(4): a(f"v_dot2c_f32_bf16 v17, s64, v{20+j}")
    for r in (8, 4, 2, 1): a(f"v_add_f32_dpp v17, v17, v17 row_ror:{r} row_mask:0xf bank_mask:0xf")
    a("""
v_readlane_b32 s67, v17, 0
v_readlane_b32 s68, v17, 16
v_readlane_b32 s69, v17, 32
v_readlane_b32 s70, v17, 48
v_mov_b32 v17, s67
v_add_f32 v17, s68, v17
v_add_f32 v17, s69, v17
v_add_f32 v17, s70, v17
s_waitcnt vmcnt(0)
""")
    stamp(5)
    a("s_barrier")
    stamp(6)
    a(f"s_lshl_b32 s57, s65, 15\ns_lshl_b32 s58, s3, 13\ns_add_u32 s57, s57, s58\ns_add_u32 s57, s57, {WS_O}\ns_add_u32 s58, s57, 4096")
    n = 0
    for i in range(32):
        for e in range(2):
            a(f"ds_read_b64_tr_b16 {V(128+4*i+2*e,2)}, v{8+(i>>3)} offset:{(i&7)*4096+e*2048}")
            n += 1
            if n % 12 == 0: a("s_waitcnt lgkmcnt(4)")
    def oloads():
        for i in range(8):
            a(f"buffer_load_dwordx4 {V(96+4*i,4)}, v5, {S4(SWS)}, s{57+(i>>2)} offen offset:{(i&3)*1024} sc1")
    def ocheck():
        a("""
v_max3_u32 v18, v96, v100, v104
v_max3_u32 v19, v108, v112, v116
v_max3_u32 v18, v18, v120, v124
v_max_u32 v18, v18, v19
v_cmp_eq_u32 vcc, -1, v18
""")
    poll(oloads, ocheck)
    stamp(7)
    for i in range(8):
        a(f"ds_write_b128 v12, {V(96+4*i,4)} offset:{i*1024}")
    a("s_waitcnt lgkmcnt(8)")
    for i in range(8): mfma32(80, 128+4*i, 96+4*i, 80)
    a("s_waitcnt lgkmcnt(0)\ns_barrier")
    lg.reset()
    def rdO(i):
        a(f"ds_read_b128 {V(32+4*(i&7),4)}, v{12+(i>>3)} offset:{(i&7)*1024}"); lg.add(i)
    for i in range(8, 14): rdO(i)
    for i in range(8, 32):
        lg.wait(i)
        mfma32(80, 128+4*i, 32+4*(i&7), 80)
        if i + 6 < 32: rdO(i + 6)
    a("v_mov_b32 v20, 0\nv_mov_b32 v21, 0\nv_mov_b32 v22, 0\nv_mov_b32 v23, s6")
    a(f"s_lshl_b32 s62, s3, 10\ns_add_u32 s62, s62, {LDS_PRE}\nv_add_u32 v24, s62, v5")
    for j in range(8): a(f"v_cvt_pk_bf16_f32 v{64+j}, v{80+2*j}, v{81+2*j}")
    for j in range(8):
        a(f"v_dot2c_f32_bf16 v20, s64, v{64+j}\nv_dot2c_f32_bf16 v21, v{64+j}, v{64+j}\nv_dot2c_f32_bf16 v22, v{72+j}, v{64+j}")
    a(f"ds_write_b128 v24, v[20:23]\ns_waitcnt lgkmcnt(0)\ns_barrier")
    stamp(8)
    a(f"""
s_lshl_b32 s57, s65, 11
s_add_u32 s57, s57, {WS_STATS}
s_cmp_lg_u32 s3, 0
s_cbranch_scc1 L_nopub
ds_read_b128 v[32:35], v24 offset:1024
ds_read_b128 v[36:39], v24 offset:2048
ds_read_b128 v[40:43], v24 offset:3072
s_lshl_b32 s58, s66, 9
s_add_u32 s58, s58, s57
s_waitcnt lgkmcnt(1)
v_pk_add_f32 v[32:33], v[32:33], v[36:37]
v_add_f32 v34, v34, v38
s_waitcnt lgkmcnt(0)
v_pk_add_f32 v[20:21], v[20:21], v[40:41]
v_add_f32 v22, v22, v42
v_pk_add_f32 v[20:21], v[20:21], v[32:33]
v_add_f32 v22, v22, v34
v_mov_b32 v32, v20
v_mov_b32 v33, v21
v_mov_b32 v34, v22
v_permlane32_swap_b32 v20, v32
v_permlane32_swap_b32 v21, v33
v_permlane32_swap_b32 v22, v34
v_pk_add_f32 v[20:21], v[20:21], v[32:33]
v_add_f32 v22, v22, v34
s_mov_b64 exec, 0xffffffff
buffer_store_dwordx4 v[20:23], v5, {S4(SWS)}, s58 offen sc1
s_mov_b64 exec, -1
L_nopub:
v_and_b32 v24, 31, v0
v_lshrrev_b32 v25, 5, v0
v_lshlrev_b32 v24, 4, v24
v_lshl_add_u32 v24, v25, 10, v24
""")
    for j in range(8):
        a(f"v_lshlrev_b32 v{80+2*j}, 16, v{64+j}\nv_and_b32 v{81+2*j}, 0xffff0000, v{64+j}")
    def sloads():
        a(f"buffer_load_dwordx4 v[32:35], v24, {S4(SWS)}, s57 offen sc1\nbuffer_load_dwordx4 v[36:39], v24, {S4(SWS)}, s57 offen offset:512 sc1")
    def scheck():
        a("v_xor_b32 v35, s6, v35\nv_xor_b32 v39, s6, v39\nv_or_b32 v35, v35, v39\nv_cmp_ne_u32 vcc, 0, v35")
    poll(sloads, scheck)
    stamp(9)
    a("""
v_pk_add_f32 v[20:21], v[32:33], v[36:37]
v_add_f32 v22, v34, v38
v_mov_b32 v32, v20
v_mov_b32 v33, v21
v_mov_b32 v34, v22
v_permlane32_swap_b32 v20, v32
v_permlane32_swap_b32 v21, v33
v_permlane32_swap_b32 v22, v34
v_pk_add_f32 v[20:21], v[20:21], v[32:33]
v_add_f32 v22, v22, v34
""")
    lnstats(20, 21, 26, 28, 25)
    a(f"""
v_fma_f32 v22, -v26, v17, v22
v_mul_f32 v22, v22, v28
v_mul_f32 v30, v26, v28
v_ashrrev_i32 v25, 31, v22
v_or_b32 v25, 0x80000000, v25
v_xor_b32 v22, v22, v25
v_and_b32 v22, 0xfffff800, v22
v_or_b32 v22, v22, v16
""")
    dp = [f"v_max_u32_dpp v22, v22, v22 row_ror:{r} row_mask:0xf bank_mask:0xf" for r in (8, 4, 2, 1)]
    for j in range(8):
        a(f"v_pk_fma_f32 {V(32+2*j,2)}, {V(80+2*j,2)}, v[28:29], v[30:31] op_sel_hi:[1,0,0] neg_lo:[0,0,1] neg_hi:[0,0,1]")
        if j % 2 == 1: a(dp[j // 2])
    for j in range(2): a(f"v_cvt_pk_bf16_f32 v{48+j}, v{32+2*j}, v{33+2*j}")
    a("v_readlane_b32 s67, v22, 0\nv_readlane_b32 s68, v22, 16")
    for j in range(2, 8): a(f"v_cvt_pk_bf16_f32 v{48+j}, v{32+2*j}, v{33+2*j}")
    a(f"""
s_max_u32 s67, s67, s68
s_andn2_b32 s68, 31, s67
s_mov_b32 s58, 1
s_mov_b32 s59, 1
s_lshl_b64 s[58:59], s[58:59], s68
s_lshl_b32 s57, s65, 11
s_add_u32 s57, s57, {WS_ROWS}
s_or_b32 s62, s3, s66
s_cmp_lg_u32 s62, 0
s_cbranch_scc1 L_nocand
v_mov_b32 v22, s67
s_lshl_b32 s62, s65, 3
s_add_u32 s62, s62, {WS_CAND}
s_mov_b64 exec, 1
buffer_store_dwordx2 v[22:23], off, {S4(SWS)}, s62 sc1
L_nocand:
s_mov_b64 exec, s[58:59]
buffer_store_dwordx4 v[48:51], v7, {S4(SWS)}, s57 offen sc1
buffer_store_dwordx4 v[52:55], v7, {S4(SWS)}, s57 offen offset:16 sc1
buffer_store_dwordx4 v[64:67], v7, {S4(SWS)}, s57 offen offset:1024 sc1
buffer_store_dwordx4 v[68:71], v7, {S4(SWS)}, s57 offen offset:1040 sc1
s_mov_b64 exec, -1
""")
    stamp(10)
    for j in range(8):
        a(f"v_lshlrev_b32 v{32+2*j}, 16, v{48+j}\nv_and_b32 v{33+2*j}, 0xffff0000, v{48+j}")
    for j in range(8): a(f"v_pk_add_f32 {V(32+2*j,2)}, {V(32+2*j,2)}, {V(80+2*j,2)}")
    for j in range(8): a(f"v_cvt_pk_bf16_f32 v{56+j}, v{32+2*j}, v{33+2*j}")
    a(f"""
v_and_b32 v24, 0xff, v7
v_add_u32 v24, {LDS_DEF}, v24
v_mov_b32 v25, s67
v_mov_b32 v26, {LDS_DEF+256}
s_mov_b64 exec, s[58:59]
ds_write_b128 v24, v[56:59]
ds_write_b128 v24, v[60:63] offset:16
ds_write_b32 v26, v25
s_not_b64 exec, exec
buffer_store_dwordx4 v[56:59], v6, {S4(SOUT)}, 0 offen
buffer_store_dwordx4 v[60:63], v6, {S4(SOUT)}, 0 offen offset:16
s_mov_b64 exec, -1
""")
    stamp(11)
if ST:
    a("s_cmp_lg_u32 s3, 0\ns_cbranch_scc1 L_end")
    dump_stamps(1)
a("s_endpgm")

vm.reset(); lg.reset()
HK, HV, MD, MO = 128, 160, 224, 240
a(f"""
L_compute:
s_and_b32 s56, s3, 1
s_lshr_b32 s57, s3, 1
v_lshlrev_b32 v1, 4, v0
v_lshrrev_b32 v28, 5, v0
v_and_b32 v29, 15, v0
v_lshl_add_u32 v29, v28, 4, v29
v_lshlrev_b32 v29, 4, v29
v_add_u32 v3, 1024, v29
v_bfe_u32 v30, v0, 4, 1
v_lshl_add_u32 v2, v30, 17, v3
s_getpc_b64 s[62:63]
L_pc:
s_sub_u32 s62, s62, L_pc-L_start
s_subb_u32 s63, s63, 0
s_lshl_b32 s60, s3, 13
v_lshl_add_u32 v31, v0, 7, s60
v_min_u32 v31, L_end-L_start, v31
global_load_dword v15, v31, s[62:63]
v_mov_b32 v16, -1
v_mov_b32 v17, -1
v_mov_b32 v18, -1
v_mov_b32 v19, -1
s_lshl_b32 s58, s5, 1
s_add_u32 s58, s58, s57
s_lshl_b32 s58, s58, 7
s_lshl_b32 s60, s4, 1
s_add_u32 s58, s58, s60
s_add_u32 s58, s58, s56
s_lshl_b32 s58, s58, 11
s_add_u32 s58, s58, {WS_KV}
s_lshl_b32 s59, s4, 4
s_add_u32 s59, s59, s5
s_lshl_b32 s59, s59, 2
s_add_u32 s59, s59, s3
s_lshl_b32 s59, s59, 10
s_add_u32 s59, s59, {WS_O}
s_add_u32 s61, s58, 0x20000
s_add_u32 s64, s59, 0x8000
s_and_b32 s66, s2, 7
s_lshr_b32 s67, s2, 3
s_mul_i32 s65, s66, 28
s_add_u32 s65, s65, s67
s_lshl_b32 s66, s66, 2
s_add_u32 s66, s66, s67
s_add_u32 s66, s66, {224-28}
s_cmp_ge_u32 s67, 28
s_cselect_b32 s65, s66, s65
s_and_b32 s66, s5, 1
s_add_u32 s66, s66, s60
s_lshl_b32 s66, s66, 11
s_lshr_b32 s67, s5, 1
s_lshl_b32 s67, s67, 8
s_add_u32 s66, s66, s67
s_add_u32 s66, s66, {WS_ROWS}
s_lshl_b32 s67, s65, 4
s_add_u32 s67, s67, {WS_ACT}
s_waitcnt lgkmcnt(0)
s_load_dword s6, s[54:55], 0
""")
srd(SWS, 54, 0x1000000)
a(f"""
buffer_store_dwordx4 v[16:19], v1, {S4(SWS)}, s58 offen sc1
buffer_store_dwordx4 v[16:19], v1, {S4(SWS)}, s58 offen offset:1024 sc1
buffer_store_dwordx4 v[16:19], v1, {S4(SWS)}, s61 offen sc1
buffer_store_dwordx4 v[16:19], v1, {S4(SWS)}, s61 offen offset:1024 sc1
buffer_store_dwordx4 v[16:19], v1, {S4(SWS)}, s59 offen sc1
buffer_store_dwordx4 v[16:19], v1, {S4(SWS)}, s64 offen sc1
s_cmp_lg_u32 s3, 0
s_cbranch_scc1 L_nopre
s_mov_b64 exec, 0xffff
buffer_store_dwordx4 v[16:19], v1, {S4(SWS)}, s66 offen sc1
buffer_store_dwordx4 v[16:19], v1, {S4(SWS)}, s66 offen offset:1024 sc1
s_mov_b64 exec, 1
buffer_store_dwordx4 v[16:19], off, {S4(SWS)}, s67 sc1
s_mov_b64 exec, -1
L_nopre:
""")
srd(SOUT, 52, 0x200000)
a(f"""
v_and_b32 v29, 31, v0
s_lshl_b32 s60, s56, 5
v_add_u32 v29, s60, v29
v_bfe_u32 v30, v29, 1, 3
v_xor_b32 v30, v30, v28
v_lshlrev_b32 v31, 7, v29
v_lshl_add_u32 v4, v30, 4, v31
v_xor_b32 v5, 32, v4
v_xor_b32 v6, 64, v4
v_xor_b32 v7, 96, v4
v_lshlrev_b32 v14, 2, v29
v_add_u32 v14, {LDS_NM}, v14
v_bfe_u32 v29, v0, 2, 2
v_lshl_add_u32 v30, v28, 3, v29
v_lshlrev_b32 v30, 7, v30
v_lshrrev_b32 v29, 1, v29
v_xor_b32 v29, s57, v29
v_lshl_add_u32 v30, v29, 6, v30
v_and_b32 v29, 16, v0
v_lshl_add_u32 v30, v29, 1, v30
v_and_b32 v29, 3, v0
v_lshl_add_u32 v30, v29, 3, v30
v_add_u32 v8, {LDS_W}, v30
v_add_u32 v9, {LDS_W+65536}, v30
v_mov_b32 v10, 0
v_mov_b32 v11, 0
v_mov_b32 v12, 0
v_mov_b32 v13, 0
s_mov_b32 s68, {ONES}
; masks
v_and_b32 v29, 31, v0
v_lshlrev_b32 v30, 2, v28
v_sub_u32 v29, v29, v30
v_mov_b32 v30, 0xf149f2ca
""")
for j in range(16):
    a(f"v_cmp_le_i32 vcc, {8*(j>>2)+(j&3)}, v29\nv_cndmask_b32_e64 v{MD+j}, v30, 0, vcc\nv_cndmask_b32 v{MO+j}, 0, v30, vcc")
a(f"""
s_lshl_b32 s60, s5, 2
s_add_u32 s60, s60, s3
s_lshl_b32 s60, s60, 5
s_add_u32 s60, s60, s4
s_lshl_b32 s60, s60, 12
s_add_u32 s60, s60, {WS_KV - 4*4096}
""")
for p in range(4):
    a(f"s_add_u32 s{96+p}, s60, {p*4096}\ns_cmp_ge_u32 s4, {4-p}\ns_cselect_b32 s{96+p}, s{96+p}, 0x7f000000\ns_cselect_b32 s69, s68, 0")
    for r in range(16): a(f"v_mov_b32 v{HV+16*p+r}, s69")
a("s_waitcnt lgkmcnt(0)\ns_mul_i32 s6, s6, 0x9E3779B1\ns_add_u32 s6, s6, 0x7F4A7C15")
for r in (21, 22, 23, 25, 26, 27): a(f"v_mov_b32 v{r}, 0")

XF, WK, WV, AK, AV, AQ, RSV, KF, VF = 32, 48, 64, 80, 96, 112, 112, 64, 72
def wslot(j):
    s = j % 5
    return (9, 0) if s == 4 else (8, s * 16384)
def rdKV(i):
    c, ks = i >> 2, i & 3
    va, off = wslot(c)
    a(f"ds_read_b128 {V(XF+4*ks,4)}, v{4+ks} offset:{c*8192}"); lg.add(i)
    for si, R in ((0, WK), (1, WV)):
        for e in range(2):
            a(f"ds_read_b64_tr_b16 {V(R+4*ks+2*e,2)}, v{va} offset:{off+si*8192+ks*2048+e*512}"); lg.add(i)
def cmpKV(i):
    ks = i & 3
    mfma32(AK, WK+4*ks, XF+4*ks, None if i == 0 else AK)
    a(f"v_dot2c_f32_bf16 v10, s68, v{WK+4*ks}\nv_dot2c_f32_bf16 v12, s68, v{WV+4*ks}\nv_dot2c_f32_bf16 v11, s68, v{WK+4*ks+1}\nv_dot2c_f32_bf16 v13, s68, v{WV+4*ks+1}")
    mfma32(AV, XF+4*ks, WV+4*ks, None if i == 0 else AV)
    a(f"v_dot2c_f32_bf16 v10, s68, v{WK+4*ks+2}\nv_dot2c_f32_bf16 v12, s68, v{WV+4*ks+2}\nv_dot2c_f32_bf16 v11, s68, v{WK+4*ks+3}\nv_dot2c_f32_bf16 v13, s68, v{WV+4*ks+3}")
a("s_barrier")
stamp(1)
rdKV(0); rdKV(1)
for i in range(32):
    nx = i + 2
    if nx < 32 and nx % 4 == 0:
        c = nx >> 2
        if c == 3: a("s_waitcnt vmcnt(0)")
        a("s_waitcnt lgkmcnt(0)\ns_barrier")
        if c == 3:
            a(f"""
s_cmp_lg_u32 s3, 0
s_cbranch_scc1 L_noflag
v_mov_b32 v28, s6
s_lshl_b32 s60, s2, 2
s_add_u32 s60, s60, {WS_FLAGS}
s_mov_b64 exec, 1
buffer_store_dword v28, off, {S4(SWS)}, s60 sc1
s_mov_b64 exec, -1
L_noflag:
v_mov_b32 v17, 0
v_mov_b32 v18, 0
v_mov_b32 v19, 0
""")
        if c == 7: stamp(2)
    else:
        lg.wait(i)
    if nx < 32: rdKV(nx)
    if i == 30:
        a(f"""
ds_read_b32 v24, v14
ds_read_b32 v14, v14 offset:{LDS_RS-LDS_NM}
v_lshrrev_b32 v28, 5, v0
s_lshl_b32 s60, s56, 7
s_add_u32 s60, s60, {LDS_RS}
v_lshl_add_u32 v28, v28, 4, s60
""")
        lg.add("st"); lg.add("st")
        for q in range(4): a(f"ds_read_b128 {V(RSV+4*q,4)}, v28 offset:{q*32}"); lg.add("st")
    cmpKV(i)
a(f"""
v_add_f32 v10, v10, v11
v_add_f32 v12, v12, v13
v_and_b32 v11, 0xffff0000, v10
v_and_b32 v13, 0xffff0000, v12
v_sub_f32 v10, v10, v11
v_sub_f32 v12, v12, v13
v_cvt_pk_bf16_f32 v16, v11, v10
v_cvt_pk_bf16_f32 v20, v13, v12
s_waitcnt lgkmcnt(0)
""")
mfma32(AK, 16, 24, AK)
mfma32(AV, 24, 20, AV)
a(f"s_movk_i32 s60, {WS_FLAGS}\nbuffer_load_dwordx4 v[28:31], v1, {S4(SWS)}, s60 offen sc1")
a("v_mov_b32 v10, 0\nv_mov_b32 v11, 0")
for j in range(8): a(f"v_pk_mul_f32 {V(AK+2*j,2)}, {V(AK+2*j,2)}, v[14:15] op_sel_hi:[1,0]")
for j in range(8): a(f"v_cvt_pk_bf16_f32 v{KF+j}, v{AK+2*j}, v{AK+2*j+1}")
a(f"buffer_store_dwordx4 {V(KF,4)}, v1, {S4(SWS)}, s58 offen sc1\nbuffer_store_dwordx4 {V(KF+4,4)}, v1, {S4(SWS)}, s61 offen sc1")
for j in range(8): a(f"v_pk_mul_f32 {V(AV+2*j,2)}, {V(AV+2*j,2)}, {V(RSV+2*j,2)}")
for j in range(8): a(f"v_cvt_pk_bf16_f32 v{VF+j}, v{AV+2*j}, v{AV+2*j+1}")
a(f"buffer_store_dwordx4 {V(VF,4)}, v2, {S4(SWS)}, s58 offen sc1\nbuffer_store_dwordx4 {V(VF+4,4)}, v2, {S4(SWS)}, s58 offen offset:512 sc1")
stamp(3)
lg.reset()
OK_, OA, QF, P, OV, S0, S1, OB = 32, 40, 56, 64, 80, 96, 112, 16
def rdQ(i):
    c, ks = i >> 2, i & 3
    va, off = wslot(8 + (i >> 3))
    a(f"ds_read_b128 {V(XF+4*ks,4)}, v{4+ks} offset:{c*8192}"); lg.add(i)
    for e in range(2):
        a(f"ds_read_b64_tr_b16 {V(WK+4*ks+2*e,2)}, v{va} offset:{off+(i&7)*2048+e*512}"); lg.add(i)
a("s_barrier")
rdQ(0); rdQ(1); rdQ(2)
for i in range(32):
    nx = i + 3; ks = i & 3
    if nx < 32 and nx % 8 == 0:
        a("s_waitcnt lgkmcnt(0)\ns_barrier")
    else:
        lg.wait(i)
    if nx < 32: rdQ(nx)
    mfma32(AQ, WK+4*ks, XF+4*ks, None if i == 0 else AQ)
    a(f"v_dot2c_f32_bf16 v10, s68, v{WK+4*ks}\nv_dot2c_f32_bf16 v11, s68, v{WK+4*ks+1}\nv_dot2c_f32_bf16 v10, s68, v{WK+4*ks+2}\nv_dot2c_f32_bf16 v11, s68, v{WK+4*ks+3}")
    if i < 8: a(f"v_mov_b32 v{OV+2*i}, s68\nv_mov_b32 v{OV+2*i+1}, s68")
    if i == 8:
        a(f"""
s_lshl_b32 s60, s57, 2
s_add_u32 s60, s60, s56
s_lshl_b32 s69, s60, 10
s_lshl_b32 s60, s60, 11
s_add_u32 s60, s60, {LDS_KX}
s_add_u32 s69, s69, {LDS_QX}
v_add_u32 v12, s60, v1
v_bfe_u32 v13, v0, 4, 1
v_lshl_add_u32 v13, v13, 12, v3
v_add_u32 v13, s60, v13
""")
    if i == 16:
        a(f"ds_write_b128 v12, {V(KF,4)}\nds_write_b128 v12, {V(KF+4,4)} offset:4096"); lg.add("x"); lg.add("x")
    if i == 18:
        a(f"ds_write_b128 v13, {V(VF,4)}\nds_write_b128 v13, {V(VF+4,4)} offset:512\nv_add_u32 v12, s69, v1"); lg.add("x"); lg.add("x")
a(f"""
v_add_f32 v10, v10, v11
v_mul_f32 v14, 0x3eb8aa3b, v14
v_and_b32 v11, 0xffff0000, v10
v_sub_f32 v10, v10, v11
v_cvt_pk_bf16_f32 v16, v11, v10
""")
mfma32(AQ, 16, 24, AQ)
def fcheck():
    a("v_xor_b32 v28, s6, v28\nv_xor_b32 v29, s6, v29\nv_xor_b32 v30, s6, v30\nv_xor_b32 v31, s6, v31\nv_or3_b32 v28, v28, v29, v30\nv_or_b32 v28, v28, v31\nv_cmp_ne_u32 vcc, 0, v28")
a("s_waitcnt vmcnt(4)")
fcheck()
a("s_cbranch_vccnz L_flagretry\nL_flagok:")
sv = a; a = tail
a(f"L_flagretry:\ns_movk_i32 s60, {WS_FLAGS}")
poll(lambda: a(f"buffer_load_dwordx4 v[28:31], v1, {S4(SWS)}, s60 offen sc1"), fcheck)
a("s_branch L_flagok")
a = sv
vm.reset()
def halo(p, track=True):
    for e in range(2):
        a(f"buffer_load_dwordx4 {V(HK+8*p+4*e,4)}, v1, {S4(SWS)}, s{96+p} offen offset:{e*2048} sc1")
        if track: vm.add(p)
    a("s_mov_b64 exec, s[100:101]")
    for e in range(4):
        a(f"buffer_load_dwordx4 {V(HV+16*p+4*e,4)}, v3, {S4(SWS)}, s{96+p} offen offset:{(e>>1)*2048+(e&1)*512} sc1")
        if track: vm.add(p)
    a("s_mov_b64 exec, -1")
def hcheck(p):
    k = HK + 8*p; v = HV + 16*p
    a(f"v_max3_u32 v4, v{k}, v{k+4}, v{v}\nv_max3_u32 v5, v{v+4}, v{v+8}, v{v+12}\nv_max_u32 v4, v4, v5\nv_cmp_eq_u32 vcc, -1, v4")
a("s_mov_b32 s100, 0xffff\ns_mov_b32 s101, 0xffff")
if STAGE >= 2:
    for p in (3, 2, 1, 0): halo(p)
for j in range(8): a(f"v_pk_mul_f32 {V(AQ+2*j,2)}, {V(AQ+2*j,2)}, v[14:15] op_sel_hi:[1,0]")
for j in range(8): a(f"v_cvt_pk_bf16_f32 v{KF+j}, v{AQ+2*j}, v{AQ+2*j+1}")
a(f"""
ds_write_b128 v12, {V(KF,4)}
ds_write_b128 v12, {V(KF+4,4)} offset:2048
s_lshl_b32 s60, s3, 12
s_add_u32 s60, s60, {LDS_KX}
v_add_u32 v12, s60, v1
v_add_u32 v13, s60, v3
s_lshl_b32 s60, s3, 11
s_add_u32 s60, s60, {LDS_QX}
v_add_u32 v11, s60, v1
s_waitcnt lgkmcnt(0)
s_barrier
""")
stamp(4)
a(f"""
ds_read_b128 {V(OK_,4)}, v12
ds_read_b128 {V(QF,4)}, v11
ds_read_b128 {V(OK_+4,4)}, v12 offset:2048
ds_read_b128 {V(QF+4,4)}, v11 offset:1024
s_mov_b64 exec, s[100:101]
ds_read_b128 {V(OV,4)}, v13
ds_read_b128 {V(OV+4,4)}, v13 offset:512
ds_read_b128 {V(OV+8,4)}, v13 offset:2048
ds_read_b128 {V(OV+12,4)}, v13 offset:2560
s_mov_b64 exec, -1
""")
if STAGE == 1:
    a(f"s_waitcnt lgkmcnt(0)\nbuffer_store_dwordx4 {V(QF,4)}, v1, {S4(SWS)}, s59 offen\nbuffer_store_dwordx4 {V(QF+4,4)}, v1, {S4(SWS)}, s64 offen")
if STAGE >= 2:
    blocks = [(0, OK_, OV, MD, None), (1, OK_+4, OV+8, MD, None), (1, OK_, OV, None, None)]
    for p in (3, 2, 1, 0):
        first = True
        for i in (2*p+1, 2*p):
            for qt in (0, 1):
                if qt == 1 and i == 0: continue
                m = MO if (i == qt) else None
                blocks.append((qt, HK+4*i, HV+8*i, m, p if first else None)); first = False
    assert len(blocks) == 18
    Sb = (S0, S1); Oacc = (OA, OB); started = [False, False]
    def QK(i):
        qt, k, v, m, chk = blocks[i]
        global a
        if chk is not None:
            vm.wait(chk)
            hcheck(chk)
            a(f"s_cbranch_vccnz L_hretry{chk}\nL_hok{chk}:")
            sv = a; a = tail
            a(f"L_hretry{chk}:")
            poll(lambda: halo(chk, False), lambda: hcheck(chk))
            a(f"s_branch L_hok{chk}")
            a = sv
            if chk == 3: stamp(5)
        mfma32(Sb[i & 1], k, QF+4*qt, m)
    def PV(i, e):
        qt, k, v, m, chk = blocks[i]
        mfma32(Oacc[qt], v+4*e, P+4*e, Oacc[qt] if started[qt] else None); started[qt] = True
    a("s_waitcnt lgkmcnt(6)")
    QK(0)
    a("s_waitcnt lgkmcnt(0)")
    for i in range(18):
        cur = Sb[i & 1]
        ex = lambda r: [a(f"v_exp_f32 v{cur+j}, v{cur+j}") for j in r]
        cv = lambda r: [a(f"v_cvt_pk_bf16_f32 v{P+j}, v{cur+2*j}, v{cur+2*j+1}") for j in r]
        if i + 1 < 18: QK(i + 1)
        ex(range(0, 4))
        if i > 0: PV(i - 1, 1)
        ex(range(4, 9)); cv(range(0, 4)); ex(range(9, 11))
        PV(i, 0)
        ex(range(11, 16)); cv(range(4, 8))
    PV(17, 1)
    a("L_attn_done:")
    a(f"""
s_mov_b32 s60, 0x21800000
v_subrev_u32 v4, s60, v{OB+8}
v_subrev_u32 v5, s60, v{OA+8}
v_max_u32 v4, v4, v5
v_cmp_lt_u32 vcc, 0x3c000000, v4
v_rcp_f32 v6, v{OB+8}
v_rcp_f32 v8, v{OA+8}
""")
    a("L_attn_norm:")
    for (acc, rc, so) in ((OB, 6, 64), (OA, 8, 59)):
        for j in range(4): a(f"v_pk_mul_f32 {V(acc+2*j,2)}, {V(acc+2*j,2)}, v[{rc}:{rc+1}] op_sel_hi:[1,0]")
        for j in range(4): a(f"v_cvt_pk_bf16_f32 v{acc+8+j}, v{acc+2*j}, v{acc+2*j+1}")
        a(f"buffer_store_dwordx4 {V(acc+8,4)}, v1, {S4(SWS)}, s{so} offen sc1")
    stamp(6)
if STAGE >= 3:
    a("s_barrier\ns_barrier\ns_barrier")
    stamp(7)
    a(f"""
s_cmp_ge_u32 s65, 224
s_cbranch_scc1 L_down
""")
    srd(SFA, 46, 512*3584); srd(SFB, 48, 512*3584)
    a(f"""
v_mul_u32_u24 v4, 3584, v0
s_mul_i32 s60, s3, {128*3584}
s_lshl_b32 s61, s65, 4
s_add_u32 s60, s60, s61
s_add_u32 s61, s60, {64*3584}
s_lshl_b32 s62, s3, 12
s_add_u32 m0, s62, 0
buffer_load_dwordx4 v4, {S4(SFA)}, s60 offen lds
s_add_u32 m0, s62, 1024
buffer_load_dwordx4 v4, {S4(SFA)}, s61 offen lds
s_add_u32 m0, s62, 2048
buffer_load_dwordx4 v4, {S4(SFB)}, s60 offen lds
s_add_u32 m0, s62, 3072
buffer_load_dwordx4 v4, {S4(SFB)}, s61 offen lds
v_lshrrev_b32 v5, 4, v0
v_bfe_u32 v6, v0, 2, 2
v_lshl_add_u32 v6, v5, 3, v6
v_lshlrev_b32 v6, 4, v6
v_and_b32 v7, 1, v0
v_lshl_add_u32 v6, v7, 3, v6
v_and_b32 v7, 2, v0
v_lshl_add_u32 v6, v7, 10, v6
v_add_u32 v6, s62, v6
v_lshlrev_b32 v5, 4, v5
s_waitcnt vmcnt(0)
""")
    for s in range(4):
        for e in range(2):
            a(f"ds_read_b64_tr_b16 {V(32+4*s+2*e,2)}, v6 offset:{s*512+e*64}")
    def cand():
        a(f"v_lshlrev_b32 v7, 3, v0\ns_mov_b32 s60, {WS_CAND}")
        poll(lambda: a(f"buffer_load_dwordx2 v[8:9], v7, {S4(SWS)}, s60 offen sc1"), lambda: a("v_cmp_ne_u32 vcc, s6, v9"))
        for r in (8, 4, 2, 1): a(f"v_max_u32_dpp v8, v8, v8 row_ror:{r} row_mask:0xf bank_mask:0xf")
        a(f"""
v_readlane_b32 s60, v8, 0
v_readlane_b32 s61, v8, 16
v_readlane_b32 s62, v8, 32
v_readlane_b32 s63, v8, 48
s_max_u32 s60, s60, s61
s_max_u32 s62, s62, s63
s_max_u32 s69, s60, s62
s_andn2_b32 s70, 0x7ff, s69
s_lshr_b32 s60, s70, 5
s_lshl_b32 s60, s60, 11
s_add_u32 s60, s60, {WS_ROWS}
""")
    cand()
    stamp(8)
    a("s_lshl_b32 s61, s3, 8\ns_add_u32 s60, s60, s61")
    def rl():
        for s in range(4): a(f"buffer_load_dwordx4 {V(48+4*s,4)}, v5, {S4(SWS)}, s60 offen offset:{s*64} sc1")
    poll(rl, lambda: a("v_max3_u32 v8, v48, v52, v56\nv_max_u32 v8, v8, v60\nv_cmp_eq_u32 vcc, -1, v8"))
    stamp(9)
    a("s_waitcnt lgkmcnt(0)")
    for s in range(4): mfma16(64, 32+4*s, 48+4*s, None if s == 0 else 64)
    def kreduce():
        a(f"""
s_lshl_b32 s61, s3, 6
s_add_u32 s61, s61, {LDS_RED}
v_and_b32 v10, 48, v0
v_add_u32 v10, s61, v10
v_lshlrev_b32 v11, 3, v0
v_add_u32 v11, {LDS_RED}, v11
s_mov_b32 exec_lo, 0x00010001
s_mov_b32 exec_hi, 0x00010001
ds_write_b128 v10, v[64:67]
s_mov_b64 exec, -1
s_waitcnt lgkmcnt(0)
s_barrier
""")
    def deferred(lab):
        a(f"""
s_cmp_lg_u32 s3, 1
s_cbranch_scc1 {lab}
v_mov_b32 v12, {LDS_DEF+256}
v_add_u32 v13, {LDS_DEF}, v1
ds_read_b32 v12, v12
ds_read_b128 v[16:19], v13
s_waitcnt lgkmcnt(0)
v_readfirstlane_b32 s61, v12
s_cmp_eq_u32 s61, s69
s_cbranch_scc1 {lab}
s_andn2_b32 s61, 0x7ff, s61
s_lshl_b32 s61, s61, 10
s_lshr_b32 s62, s5, 1
s_lshl_b32 s62, s62, 8
s_add_u32 s61, s61, s62
s_mov_b64 exec, 0xffff
buffer_store_dwordx4 v[16:19], v1, {S4(SOUT)}, s61 offen
s_mov_b64 exec, -1
{lab}:
""")
    kreduce()
    a(f"""
s_cmp_lg_u32 s3, 0
s_cbranch_scc1 L_gu_other
s_mov_b64 exec, 0xf
ds_read2_b64 v[16:19], v11 offset0:0 offset1:4
ds_read2_b64 v[20:23], v11 offset0:8 offset1:12
ds_read2_b64 v[24:27], v11 offset0:16 offset1:20
ds_read2_b64 v[28:31], v11 offset0:24 offset1:28
v_lshlrev_b32 v10, 2, v0
s_waitcnt lgkmcnt(2)
v_pk_add_f32 v[16:17], v[16:17], v[20:21]
v_pk_add_f32 v[18:19], v[18:19], v[22:23]
s_waitcnt lgkmcnt(0)
v_pk_add_f32 v[24:25], v[24:25], v[28:29]
v_pk_add_f32 v[26:27], v[26:27], v[30:31]
v_pk_add_f32 v[16:17], v[16:17], v[24:25]
v_pk_add_f32 v[18:19], v[18:19], v[26:27]
v_cvt_pk_bf16_f32 v20, v16, v17
v_cvt_pk_bf16_f32 v21, v18, v19
v_lshlrev_b32 v16, 16, v20
v_and_b32 v17, 0xffff0000, v20
v_mul_f32 v22, 0xbfb8aa3b, v16
v_mul_f32 v23, 0xbfb8aa3b, v17
v_exp_f32 v22, v22
v_exp_f32 v23, v23
v_lshlrev_b32 v18, 16, v21
v_and_b32 v19, 0xffff0000, v21
v_add_f32 v22, 1.0, v22
v_add_f32 v23, 1.0, v23
v_rcp_f32 v22, v22
v_rcp_f32 v23, v23
v_mul_f32 v16, v16, v22
v_mul_f32 v17, v17, v23
v_cvt_pk_bf16_f32 v20, v16, v17
v_lshlrev_b32 v16, 16, v20
v_and_b32 v17, 0xffff0000, v20
v_pk_mul_f32 v[16:17], v[16:17], v[18:19]
v_cvt_pk_bf16_f32 v20, v16, v17
buffer_store_dword v20, v10, {S4(SWS)}, s67 offen sc1
s_mov_b64 exec, -1
L_gu_other:
""")
    stamp(10)
    deferred("L_gu_done")
    a("s_branch L_cend")
    a("L_down:")
    srd(SFA, 50, 1792*1024)
    a(f"""
v_lshrrev_b32 v4, 1, v0
v_and_b32 v5, 1, v0
v_lshlrev_b32 v4, 10, v4
v_lshl_add_u32 v4, v5, 4, v4
s_sub_u32 s65, s65, 224
s_lshl_b32 s65, s65, 5
s_mul_i32 s60, s3, {448*1024}
s_add_u32 s60, s60, s65
s_mul_i32 s62, s3, {448*32}
""")
    for s in range(14):
        a(f"s_add_u32 m0, s62, {s*1024}\ns_add_u32 s61, s60, {s*32768}\nbuffer_load_dwordx4 v4, {S4(SFA)}, s61 offen lds")
    a(f"""
v_lshrrev_b32 v5, 4, v0
v_bfe_u32 v6, v0, 2, 2
v_lshl_add_u32 v6, v5, 3, v6
v_lshlrev_b32 v6, 5, v6
v_and_b32 v7, 3, v0
v_lshl_add_u32 v6, v7, 3, v6
v_add_u32 v6, s62, v6
v_and_b32 v7, 15, v0
v_min_u32 v7, 13, v7
v_lshl_add_u32 v5, v7, 2, v5
v_lshlrev_b32 v5, 4, v5
s_waitcnt vmcnt(0)
""")
    for s in range(14):
        for e in range(2):
            a(f"ds_read_b64_tr_b16 {V(128+4*s+2*e,2)}, v6 offset:{s*1024+e*128}")
        if s in (5, 10): a("s_waitcnt lgkmcnt(2)")
    cand()
    stamp(8)
    a(f"""
s_add_u32 s60, s60, s65
v_and_b32 v14, 7, v0
v_lshlrev_b32 v14, 2, v14
""")
    poll(lambda: a(f"buffer_load_dword v32, v14, {S4(SWS)}, s60 offen sc1\nbuffer_load_dword v33, v14, {S4(SWS)}, s60 offen offset:1024 sc1"),
         lambda: a("v_max_u32 v8, v32, v33\nv_cmp_eq_u32 vcc, -1, v8"))
    a(f"""
s_and_b32 s61, s69, 0xfffff800
s_not_b32 s62, s61
s_xor_b32 s63, s61, 0x80000000
s_cmp_ge_u32 s61, 0x80000000
s_cselect_b32 s61, s63, s62
v_mov_b32 v34, s61
v_cvt_pk_bf16_f32 v34, v34, v34
v_and_b32 v34, 0xffff0000, v34
v_mul_f32 v34, 0xbfb8aa3b, v34
v_exp_f32 v34, v34
v_add_f32 v34, 1.0, v34
v_rcp_f32 v34, v34
v_cvt_pk_bf16_f32 v34, v34, v34
v_and_b32 v34, 0xffff0000, v34
v_lshlrev_b32 v36, 16, v32
v_and_b32 v37, 0xffff0000, v32
v_lshlrev_b32 v38, 16, v33
v_and_b32 v39, 0xffff0000, v33
s_mul_i32 s60, s3, {56*16}
s_add_u32 s60, s60, {WS_ACT}
""")
    poll(lambda: a(f"buffer_load_dwordx4 v[40:43], v5, {S4(SWS)}, s60 offen sc1"),
         lambda: a("v_max3_u32 v8, v40, v41, v42\nv_max_u32 v8, v8, v43\nv_cmp_eq_u32 vcc, -1, v8"))
    stamp(9)
    a("s_waitcnt lgkmcnt(0)")
    for s in range(14):
        B = 48 + 4*(s & 1)
        for j in range(4): a(f"v_mov_b32_dpp v{B+j}, v{40+j} row_newbcast:{s} row_mask:0xf bank_mask:0xf")
        if s > 0: mfma16(64, 128+4*(s-1), 48+4*((s-1)&1), None if s == 1 else 64)
    mfma16(64, 128+4*13, 52, 64)
    kreduce()
    a(f"""
s_cmp_lg_u32 s3, 0
s_cbranch_scc1 L_dn_other
s_mov_b64 exec, 0xff
ds_read2_b64 v[16:19], v11 offset0:0 offset1:8
ds_read2_b64 v[20:23], v11 offset0:16 offset1:24
s_lshl_b32 s60, s70, 10
s_add_u32 s60, s60, s65
s_waitcnt lgkmcnt(0)
v_pk_add_f32 v[16:17], v[16:17], v[18:19]
v_pk_add_f32 v[20:21], v[20:21], v[22:23]
v_pk_add_f32 v[16:17], v[16:17], v[20:21]
v_cvt_pk_bf16_f32 v20, v16, v17
v_lshlrev_b32 v16, 16, v20
v_and_b32 v17, 0xffff0000, v20
v_pk_mul_f32 v[16:17], v[16:17], v[34:35] op_sel_hi:[1,0]
v_cvt_pk_bf16_f32 v20, v16, v17
v_lshlrev_b32 v16, 16, v20
v_and_b32 v17, 0xffff0000, v20
v_pk_add_f32 v[16:17], v[16:17], v[36:37]
v_cvt_pk_bf16_f32 v20, v16, v17
v_lshlrev_b32 v16, 16, v20
v_and_b32 v17, 0xffff0000, v20
v_pk_add_f32 v[16:17], v[16:17], v[38:39]
v_cvt_pk_bf16_f32 v20, v16, v17
buffer_store_dword v20, v14, {S4(SOUT)}, s60 offen
s_cmp_lg_u32 s65, 0
s_cbranch_scc1 L_dn_other
s_mov_b64 exec, 1
v_mov_b32 v20, s6
buffer_store_dword v20, off, {S4(SWS)}, 0 sc1
L_dn_other:
s_mov_b64 exec, -1
""")
    stamp(10)
    deferred("L_dn_done")
    a("L_cend:")
stamp(11)
if ST:
    a("s_cmp_lg_u32 s3, 0\ns_cbranch_scc1 L_end")
    dump_stamps(0)
a("s_endpgm")
lines = a.L + tail.L + ["L_end:"]
lines = fix_hazards(lines)
print(wrap("\n".join(lines), 256, 512, 163840))
```

```python
import sys
from asmlib import *
OPT = dict(stamps=0, stage=9, bound=20000, rot=0, seq=0, nodot=0, fine=0, qpre=0, map=0, pf=1, outsc=1, csh=7, outpos=1, gupos=0, pdelay=0, pt=7, worot=1, nopre=0)
for x in sys.argv[1:]:
    k, v = x.split("="); OPT[k] = int(v, 0)
ST = OPT["stamps"]; STAGE = OPT["stage"]; BOUND = OPT["bound"]; CSH = OPT["csh"]

WS_FLAGS=0x1000; WS_STATS=0x2000; WS_CAND=0x30000; WS_ROWS=0x40000; WS_PART=0x80000
WS_KV=0x100000; WS_O=0x500000; WS_STAMP=0x800000; WS_DBG=0x900000
LDS_W=65536; LDS_KX=131072; LDS_QX=147456; LDS_NM=147456; LDS_RS=147712; LDS_WD=155648
LDS_GU=16384; LDS_PRE=24576; LDS_KEY=28672; LDS_RED=28928; LDS_OT=53248
SX, SW, SWS, SWO, SOUT, SFA, SFB = 8, 12, 16, 20, 24, 28, 32
def S4(n): return f"s[{n}:{n+3}]"
def V(n, k): return f"v[{n}:{n+k-1}]"
ONES = 0x3F803F80
OS = 8
a = Asm()
tail = Asm(); tail.nlab = 1000

class Cnt:
    def __init__(s, name, mx): s.ops = []; s.name = name; s.mx = mx
    def add(s, tag): s.ops.append(tag)
    def wait(s, tag):
        idx = max(i for i, t in enumerate(s.ops) if t == tag)
        n = len(s.ops) - 1 - idx
        a(f"s_waitcnt {s.name}({min(n, s.mx)})")
    def reset(s): s.ops = []

def stamp(i):
    if ST: a(f"s_memrealtime s[{72+2*i}:{73+2*i}]")
def dump_stamps(base):
    if not ST: return
    a("s_waitcnt lgkmcnt(0)")
    a("s_mov_b64 exec, -1")
    for i in range(12):
        a(f"v_writelane_b32 v4, s{72+2*i}, {i}\nv_writelane_b32 v5, s{73+2*i}, {i}")
    a(f"""
v_lshlrev_b32 v6, 3, v0
s_mul_i32 s56, s2, 192
s_add_u32 s56, s56, {WS_STAMP + base*96}
s_mov_b64 exec, 0xfff
buffer_store_dwordx2 v[4:5], v6, {S4(SWS)}, s56 offen
s_mov_b64 exec, -1
""")
def srd(n, lo, size):
    a(f"s_mov_b32 s{n}, s{lo}\ns_mov_b32 s{n+1}, s{lo+1}\ns_mov_b32 s{n+2}, {size}\ns_mov_b32 s{n+3}, 0x00020000")
def lnstats(s1, s2, m, rs, t):
    a(f"""
v_mul_f32 v{m}, 0x3b000000, v{s1}
v_mul_f32 v{s2}, 0x3b000000, v{s2}
v_fma_f32 v{s2}, -v{m}, v{m}, v{s2}
v_max_f32 v{s2}, 0, v{s2}
v_cvt_pk_bf16_f32 v{t}, v{m}, v{s2}
v_and_b32 v{s2}, 0xffff0000, v{t}
v_add_f32 v{s2}, 0x3727c5ac, v{s2}
v_lshlrev_b32 v{m}, 16, v{t}
v_cvt_pk_bf16_f32 v{s2}, v{s2}, v{s2}
v_and_b32 v{s2}, 0xffff0000, v{s2}
v_sqrt_f32 v{s2}, v{s2}
v_cvt_pk_bf16_f32 v{s2}, v{s2}, v{s2}
v_and_b32 v{s2}, 0xffff0000, v{s2}
v_rcp_f32 v{rs}, v{s2}
""")
def poll(loads, check, cnt=71):
    L = a.lab("poll"); D = a.lab("polld")
    a(f"s_movk_i32 s{cnt}, {BOUND}\n{L}:")
    loads()
    a("s_waitcnt vmcnt(0)")
    check()
    a(f"s_cbranch_vccz {D}\ns_sub_u32 s{cnt}, s{cnt}, 1\ns_cbranch_scc0 {L}\n{D}:")
def mfma32(d, A, B, C):
    c = "0" if C is None else V(C, 16)
    a(f"v_mfma_f32_32x32x16_bf16 {V(d,16)}, {V(A,4)}, {V(B,4)}, {c}")
def mfma16(d, A, B, C):
    c = "0" if C is None else V(C, 4)
    a(f"v_mfma_f32_16x16x32_bf16 {V(d,4)}, {V(A,4)}, {V(B,4)}, {c}")

MAP2 = ""
if OPT["map"] == 1:
    MAP2 = "s_and_b32 s5, s57, 7\ns_lshr_b32 s58, s57, 3\ns_lshl_b32 s4, s56, 2\ns_or_b32 s4, s4, s58\ns_lshl_b32 s7, s4, 1\ns_add_u32 s7, s7, s5"
else:
    MAP2 = "s_lshl_b32 s7, s5, 1\ns_add_u32 s7, s7, s4"
if not OPT["rot"]: MAP2 += "\ns_mov_b32 s7, 0"
a("L_start:")
if ST:
    for i in range(1, 12): a(f"s_mov_b64 s[{72+2*i}:{73+2*i}], 0")
stamp(0)
a(f"""
s_load_dwordx16 s[36:51], s[0:1], 0
s_load_dwordx2 s[52:53], s[0:1], 64
s_load_dwordx2 s[54:55], s[0:1], 80
s_cmp_ge_u32 s2, 256
s_cbranch_scc1 L_end
v_lshrrev_b32 v1, 6, v0
v_and_b32 v0, 63, v0
s_and_b32 s56, s2, 7
v_readfirstlane_b32 s3, v1
s_lshr_b32 s57, s2, 3
s_and_b32 s5, s56, 1
s_lshl_b32 s5, s5, 2
s_and_b32 s58, s57, 3
s_or_b32 s5, s5, s58
s_lshr_b32 s4, s56, 1
s_lshl_b32 s4, s4, 3
s_lshr_b32 s58, s57, 2
s_or_b32 s4, s4, s58
{MAP2}
s_cmp_lt_u32 s3, 4
s_cbranch_scc1 L_compute
""")

vm = Cnt("vmcnt", 63); lg = Cnt("lgkmcnt", 15)
a(f"""
s_sub_u32 s3, s3, 4
v_lshrrev_b32 v1, 3, v0
v_and_b32 v2, 7, v0
v_lshrrev_b32 v3, 4, v0
v_xor_b32 v10, v2, v3
v_lshlrev_b32 v11, 10, v1
v_lshl_add_u32 v4, v10, 4, v11
v_xor_b32 v5, 64, v4
v_add_u32 v5, 8192, v5
v_and_b32 v10, 1, v3
v_lshlrev_b32 v10, 2, v10
v_xor_b32 v10, v10, v2
v_mul_u32_u24 v11, 3072, v1
v_lshl_add_u32 v6, v10, 4, v11
v_add_u32 v7, 24576, v6
s_lshl_b32 s57, s4, 16
s_lshl_b32 s60, s3, 14
s_add_u32 s57, s57, s60
s_lshl_b32 s58, s5, 7
s_mul_i32 s60, s3, {16*3072}
s_and_b32 s59, s3, 1
s_mul_i32 s59, s59, {32*3072}
s_add_u32 s59, s59, s58
s_lshr_b32 s70, s3, 1
s_add_u32 s70, s70, s7
s_add_u32 s58, s58, s60
s_lshl_b32 s60, s3, 11
s_lshl_b32 s61, s3, 12
s_mov_b32 s{SX+2}, 0x200000
s_mov_b32 s{SX+3}, 0x00020000
s_mov_b32 s{SW+2}, 0x180000
s_mov_b32 s{SW+3}, 0x00020000
s_waitcnt lgkmcnt(0)
s_mov_b64 s[{SX}:{SX+1}], s[36:37]
s_mov_b64 s[{SW}:{SW+1}], s[38:39]
""")
def dX(c):
    a(f"s_add_u32 s62, s7, {c}\ns_and_b32 s62, s62, 7\ns_lshl_b32 s62, s62, 7\ns_add_u32 s62, s62, s57")
    for e in range(2):
        a(f"s_add_u32 m0, s60, {c*8192 + e*1024}")
        a(f"buffer_load_dwordx4 v{4+e}, {S4(SX)}, s62 offen lds"); vm.add(f"X{c}")
def dW(j):
    slot = j % 5
    if j < 8:
        a(f"s_add_u32 s62, s7, {j}\ns_and_b32 s62, s62, 7\ns_mul_i32 s62, s62, {64*3072}\ns_add_u32 s62, s62, s58")
        for si in range(2):
            for e in range(2):
                so = 1024 * (si + 1)
                a(f"s_add_u32 m0, s60, {LDS_W + slot*16384 + si*8192 + e*1024 - so}")
                a(f"buffer_load_dwordx4 v{6+e}, {S4(SW)}, s62 offen offset:{so} lds"); vm.add(f"W{j}")
    else:
        q = j - 8
        for jj in range(2):
            if jj == 0: a(f"s_add_u32 s62, s70, {2*q}\ns_and_b32 s62, s62, 7\ns_mul_i32 s62, s62, {64*3072}\ns_add_u32 s62, s62, s59")
            else: a(f"s_add_u32 s62, s62, {16*3072}")
            for e in range(2):
                a(f"s_add_u32 m0, s61, {LDS_W + slot*16384 + (2*jj+e)*1024}")
                a(f"buffer_load_dwordx4 v{6+e}, {S4(SW)}, s62 offen lds"); vm.add(f"W{j}")
def issue(lst):
    for t in lst.split():
        (dX if t[0] == "X" else dW)(int(t[1:]))
SEQ = [["X0 W0 X1 W1 X2 X3 W2", "X4 W3", "X5 X6 W4", "X7 W5", "W6", "W7 W8", "W9", "W10", "W11"],
       ["X0 W0 X1 W1 X2 X3 W2 X4 W3", "X5 X6 W4", "X7 W5", "W6", "W7", "W8", "W9", "W10", "W11"],
       ["X0 W0 X1 W1 X2 X3 W2 X4 W3 X5 X6 W4", "X7", "W5", "W6", "W7", "W8", "W9", "W10", "W11"]][OPT["seq"]]
issue(SEQ[0])
a(f"s_load_dword s6, s[54:55], 0")
srd(SWS, 54, 0x1000000)
srd(SWO, 40, 0x80000)
srd(SOUT, 52, 0x200000)
a(f"""
v_lshrrev_b32 v1, 2, v0
s_lshl_b32 s63, s3, 4
v_add_u32 v1, s63, v1
v_lshrrev_b32 v2, 1, v1
v_and_b32 v2, 1, v2
v_and_b32 v3, 3, v0
v_lshl_add_u32 v2, v2, 2, v3
v_lshlrev_b32 v3, 7, v1
v_lshl_add_u32 v8, v2, 4, v3
v_xor_b32 v9, 64, v8
v_lshlrev_b32 v14, 2, v1
v_add_u32 v14, {LDS_NM}, v14
v_mov_b32 v10, 0
v_mov_b32 v11, 0
v_mov_b32 v12, 0
v_mov_b32 v13, 0
s_mov_b32 s64, {ONES}
s_waitcnt lgkmcnt(0)
s_mul_i32 s6, s6, 0x9E3779B1
s_add_u32 s6, s6, 0x7F4A7C15
""")
def xstats(cs):
    for i, c in enumerate(cs):
        a(f"ds_read_b128 {V(16+8*i,4)}, v8 offset:{c*8192}\nds_read_b128 {V(20+8*i,4)}, v9 offset:{c*8192}")
    a("s_waitcnt lgkmcnt(0)")
    for r in range(16, 16 + 8*len(cs), 2):
        a(f"v_dot2c_f32_bf16 v10, s64, v{r}\nv_dot2c_f32_bf16 v12, v{r}, v{r}\nv_dot2c_f32_bf16 v11, s64, v{r+1}\nv_dot2c_f32_bf16 v13, v{r+1}, v{r+1}")
done_x = 0
XS = {1: [0, 1], 2: [2, 3], 3: [4], 4: [5, 6], 5: [7]}
for c in range(8):
    vm.wait(f"W{c}")
    a("s_barrier")
    if OPT["fine"] and c < 7: stamp(5 + c)
    if c == 0: stamp(1)
    if c == 7: stamp(2)
    issue(SEQ[c+1])
    if c in XS:
        for x in XS[c]: assert vm.ops.index(f"X{x}") < vm.ops.index(f"W{c}")
        xstats(XS[c])
    if c == 5:
        a("""
v_add_f32 v10, v10, v11
v_add_f32 v12, v12, v13
v_add_f32_dpp v10, v10, v10 quad_perm:[1,0,3,2] row_mask:0xf bank_mask:0xf
v_add_f32_dpp v12, v12, v12 quad_perm:[1,0,3,2] row_mask:0xf bank_mask:0xf
v_add_f32_dpp v10, v10, v10 quad_perm:[2,3,0,1] row_mask:0xf bank_mask:0xf
v_add_f32_dpp v12, v12, v12 quad_perm:[2,3,0,1] row_mask:0xf bank_mask:0xf
""")
        lnstats(10, 12, 11, 13, 15)
        a(f"""
v_cvt_pk_bf16_f32 v11, -v11, -v11
ds_write_b32 v14, v11
ds_write_b32 v14, v13 offset:{LDS_RS-LDS_NM}
s_waitcnt lgkmcnt(0)
""")
a(f"""
s_lshr_b32 s65, s5, 2
s_lshl_b32 s63, s4, 1
s_add_u32 s65, s65, s63
s_and_b32 s66, s5, 3
v_lshrrev_b32 v1, 4, v0
v_and_b32 v2, 15, v0
v_lshlrev_b32 v3, 2, v1
v_xor_b32 v2, v2, v3
v_lshlrev_b32 v1, 10, v1
v_lshl_add_u32 v4, v2, 4, v1
s_lshl_b32 s57, s66, 8
s_lshl_b32 s58, s3, 17
s_add_u32 s57, s57, s58
s_lshl_b32 s60, s3, 15
v_bfe_u32 v1, v0, 2, 2
v_lshrrev_b32 v2, 5, v0
v_lshl_add_u32 v2, v2, 2, v1
v_lshlrev_b32 v2, 8, v2
v_add_u32 v2, s60, v2
v_lshlrev_b32 v3, 6, v1
v_and_b32 v1, 1, v0
v_lshl_add_u32 v2, v1, 5, v2
v_and_b32 v1, 16, v0
v_add_u32 v2, v2, v1
v_and_b32 v1, 2, v0
v_lshl_add_u32 v2, v1, 2, v2
v_lshlrev_b32 v5, 4, v0
""")
for q in range(4):
    a(f"s_add_u32 s63, s3, {q}\ns_and_b32 s63, s63, 3\ns_lshl_b32 s62, s63, 6\nv_xor_b32 v1, s62, v3\nv_add_u32 v{8+q}, v1, v2")
a(f"""
s_lshl_b32 s62, s66, 8
s_lshl_b32 s63, s3, 6
s_add_u32 s62, s62, s63
v_lshrrev_b32 v1, 5, v0
v_lshl_add_u32 v7, v1, 5, s62
v_and_b32 v1, 31, v0
s_lshl_b32 s63, s65, 5
v_add_u32 v1, s63, v1
v_lshl_add_u32 v6, v1, 10, v7
v_sub_u32 v16, 2047, v1
""")
for j in range(8, 12):
    vm.wait(f"W{j}")
    a("s_barrier")
stamp(3)
vm.reset()
a(f"""
buffer_load_dwordx4 v[64:67], v6, {S4(SX)}, 0 offen
buffer_load_dwordx4 v[68:71], v6, {S4(SX)}, 0 offen offset:16
global_load_dwordx4 v[24:27], v7, s[44:45]
global_load_dwordx4 v[28:31], v7, s[44:45] offset:16
global_load_dwordx4 v[20:23], v5, s[44:45]
s_barrier
""")
stamp(4)
if STAGE >= 3:
    for i in range(32):
        if i % 4 == 0:
            a(f"s_add_u32 s62, s4, {i//4}\ns_and_b32 s62, s62, 7" if OPT["worot"] else f"s_mov_b32 s62, {i//4}")
            a(f"s_lshl_b32 s{OS+i//4}, s62, 10\ns_lshl_b32 s62, s62, 14\ns_add_u32 s62, s62, s57")
        else: a("s_add_u32 s62, s62, 4096")
        a(f"s_add_u32 m0, s60, {i*1024}")
        a(f"buffer_load_dwordx4 v4, {S4(SWO)}, s62 offen lds")
    NX = 2
    srd(SFA, 50, 1792*1024)
    a(f"""
s_and_b32 s68, s2, 7
s_lshr_b32 s69, s2, 3
s_mul_i32 s62, s68, 28
s_add_u32 s62, s62, s69
s_cmp_ge_u32 s69, 28
s_cselect_b32 s62, 224, s62
s_lshl_b32 s62, s62, 13
s_lshl_b32 s63, s3, 11
s_add_u32 s62, s62, s63
s_add_u32 m0, s63, {LDS_WD}
buffer_load_dwordx4 v5, {S4(SFA)}, s62 offen lds
buffer_load_dwordx4 v5, {S4(SFA)}, s62 offen offset:1024 lds
""")
    if OPT["pf"] & 1:
        NX += 1
        a(f"""
s_lshl_b32 s69, s69, 1
s_and_b32 s62, s3, 1
s_add_u32 s69, s69, s62
s_mul_i32 s69, s69, {8*3584}
s_mul_i32 s68, s68, 448
s_andn2_b32 s68, s68, 127
s_add_u32 s69, s69, s68
v_lshrrev_b32 v18, 3, v0
v_mul_u32_u24 v18, 3584, v18
v_and_b32 v19, 7, v0
v_lshl_add_u32 v18, v19, 6, v18
v_add_u32 v18, s69, v18
s_cmp_lt_u32 s3, 2
s_cselect_b32 s70, s46, s48
s_cselect_b32 s71, s47, s49
global_load_dword v19, v18, s[70:71]
""")
    if OPT["pt"]:
        NX += 1
        a(f"""
s_lshl_b32 s62, s65, 11
s_add_u32 s62, s62, {WS_STATS}
s_lshr_b32 s69, s2, 3
s_lshl_b32 s63, s69, 8
s_add_u32 s63, s63, {WS_CAND}
s_cmp_eq_u32 s3, 0
s_cselect_b32 s62, s62, s63
s_cselect_b32 s63, {15 if OPT["pt"] & 1 else 0}, 1
s_and_b32 s68, s2, 7
s_lshl_b32 s68, s68, 2
s_add_u32 s68, s68, s69
s_sub_u32 s68, s68, 28
s_lshl_b32 s68, s68, 1
s_add_u32 s68, s68, s3
s_sub_u32 s68, s68, 2
s_mul_i32 s68, s68, 7168
s_add_u32 s68, s68, {WS_PART}
s_cmp_ge_u32 s69, 28
s_cselect_b32 s68, s68, 0x7f000000
s_cmp_ge_u32 s3, 2
s_cselect_b32 s62, s68, s62
s_cselect_b32 s63, 55, s63
v_min_u32 v18, s63, v0
v_lshlrev_b32 v18, 7, v18
buffer_load_dword v19, v18, {S4(SWS)}, s62 offen sc1
""")
    a(f"s_waitcnt vmcnt({32+NX})")
    for j in range(8):
        a(f"v_lshlrev_b32 v{80+2*j}, 16, v{64+j}\nv_and_b32 v{81+2*j}, 0xffff0000, v{64+j}")
    a("v_mov_b32 v17, 0")
    for j in range(4): a(f"v_dot2c_f32_bf16 v17, s64, v{20+j}")
    for r in (8, 4, 2, 1): a(f"v_add_f32_dpp v17, v17, v17 row_ror:{r} row_mask:0xf bank_mask:0xf")
    a(f"""
v_readlane_b32 s67, v17, 0
v_readlane_b32 s68, v17, 16
v_readlane_b32 s69, v17, 32
v_readlane_b32 s70, v17, 48
v_mov_b32 v17, s67
v_add_f32 v17, s68, v17
v_add_f32 v17, s69, v17
v_add_f32 v17, s70, v17
v_add_u32 v12, s60, v5
s_lshl_b32 s62, s3, 10
s_add_u32 s62, s62, {LDS_PRE}
v_add_u32 v13, s62, v5
v_and_b32 v14, 31, v0
v_lshrrev_b32 v15, 5, v0
v_lshlrev_b32 v14, 4, v14
v_lshl_add_u32 v14, v15, 10, v14
v_mov_b32 v20, 0
v_mov_b32 v21, 0
v_mov_b32 v22, 0
v_mov_b32 v23, s6
s_lshl_b32 s57, s65, 15
s_lshl_b32 s58, s3, 13
s_add_u32 s57, s57, s58
s_add_u32 s57, s57, {WS_O}
""")
    for i in range(8): a(f"s_add_u32 s{OS+i}, s{OS+i}, s57")
    WR = lambda q, s_: 128 + 32*q + 4*s_
    for s_ in range(8):
        a(f"s_waitcnt vmcnt({28-4*s_+NX}) lgkmcnt(4)")
        for q in range(4):
            for e in range(2):
                a(f"ds_read_b64_tr_b16 {V(WR(q,s_)+2*e,2)}, v{8+q} offset:{s_*4096+e*2048}")
    a(f"s_waitcnt lgkmcnt(0) vmcnt({NX-2})")
    for q in (1, 2, 3):
        a(f"s_sub_u32 s62, s3, {q}\ns_and_b32 s62, s62, 3\ns_lshl_b32 s62, s62, 15\nv_add_u32 v{7+q}, s62, v5")
    stamp(5)
    a("s_barrier")
    stamp(6)
    def oloads():
        for i in range(8):
            a(f"buffer_load_dwordx4 {V(96+4*i,4)}, v5, {S4(SWS)}, s{OS+i} offen sc1")
    def ocheck():
        a("""
v_max3_u32 v18, v96, v100, v104
v_max3_u32 v19, v108, v112, v116
v_max3_u32 v18, v18, v120, v124
v_max_u32 v18, v18, v19
v_cmp_eq_u32 vcc, -1, v18
""")
    poll(oloads, ocheck)
    stamp(7)
    a("s_barrier")
    ACC = {0: 80, 1: 32, 2: 48, 3: 64}
    for q in (1, 2, 3, 0):
        pq = {2: 1, 3: 2, 0: 3}.get(q)
        for s_ in range(8):
            mfma32(ACC[q], WR(q, s_), 96 + 4*s_, ACC[q] if (s_ or q == 0) else None)
            if pq and q != 0 and 1 <= s_ <= 4:
                a(f"ds_write_b128 v12, {V(ACC[pq]+4*(s_-1),4)} offset:{(pq-1)*4096+(s_-1)*1024}")
            if q == 0 and s_ in (1, 2):
                for j in (2*s_-2, 2*s_-1): a(f"ds_write_b128 v12, {V(ACC[pq]+4*j,4)} offset:{(pq-1)*4096+j*1024}")
            if q == 0 and s_ == 4:
                a("s_waitcnt lgkmcnt(0)\ns_barrier")
                for j in range(4):
                    for qq in (1, 2, 3):
                        a(f"ds_read_b128 {V(ACC[qq]+4*j,4)}, v{7+qq} offset:{(qq-1)*4096+j*1024}")
    for j in range(4):
        a(f"s_waitcnt lgkmcnt({9-3*j})")
        for r in (0, 2):
            a(f"v_pk_add_f32 {V(32+4*j+r,2)}, {V(32+4*j+r,2)}, {V(48+4*j+r,2)}")
            a(f"v_pk_add_f32 {V(80+4*j+r,2)}, {V(80+4*j+r,2)}, {V(64+4*j+r,2)}")
    for j in range(8): a(f"v_pk_add_f32 {V(80+2*j,2)}, {V(80+2*j,2)}, {V(32+2*j,2)}")
    for j in range(8): a(f"v_cvt_pk_bf16_f32 v{64+j}, v{80+2*j}, v{81+2*j}")
    for j in range(8):
        a(f"v_dot2c_f32_bf16 v20, s64, v{64+j}\nv_dot2c_f32_bf16 v21, v{64+j}, v{64+j}\nv_dot2c_f32_bf16 v22, v{24+j}, v{64+j}")
    a(f"ds_write_b128 v13, v[20:23]\ns_waitcnt lgkmcnt(0)\ns_barrier")
    stamp(8)
    a(f"""
s_lshl_b32 s57, s65, 11
s_add_u32 s57, s57, {WS_STATS}
s_cmp_lg_u32 s3, 0
s_cbranch_scc1 L_nopub
ds_read_b128 v[32:35], v13 offset:1024
ds_read_b128 v[36:39], v13 offset:2048
ds_read_b128 v[40:43], v13 offset:3072
s_lshl_b32 s58, s66, 9
s_add_u32 s58, s58, s57
s_waitcnt lgkmcnt(1)
v_pk_add_f32 v[32:33], v[32:33], v[36:37]
v_add_f32 v34, v34, v38
s_waitcnt lgkmcnt(0)
v_pk_add_f32 v[20:21], v[20:21], v[40:41]
v_add_f32 v22, v22, v42
v_pk_add_f32 v[20:21], v[20:21], v[32:33]
v_add_f32 v22, v22, v34
v_mov_b32 v32, v20
v_mov_b32 v33, v21
v_mov_b32 v34, v22
v_permlane32_swap_b32 v20, v32
v_permlane32_swap_b32 v21, v33
v_permlane32_swap_b32 v22, v34
v_pk_add_f32 v[20:21], v[20:21], v[32:33]
v_add_f32 v22, v22, v34
s_mov_b64 exec, 0xffffffff
buffer_store_dwordx4 v[20:23], v5, {S4(SWS)}, s58 offen sc1
s_mov_b64 exec, -1
L_nopub:
""")
    for j in range(8):
        a(f"v_lshlrev_b32 v{80+2*j}, 16, v{64+j}\nv_and_b32 v{81+2*j}, 0xffff0000, v{64+j}")
    def sloads():
        a(f"buffer_load_dwordx4 v[32:35], v14, {S4(SWS)}, s57 offen sc1\nbuffer_load_dwordx4 v[36:39], v14, {S4(SWS)}, s57 offen offset:512 sc1")
    def scheck():
        a("v_bitop3_b32 v35, v35, v39, s6 bitop3:0x7e\nv_cmp_ne_u32 vcc, 0, v35")
    poll(sloads, scheck)
    stamp(9)
    a("""
v_pk_add_f32 v[20:21], v[32:33], v[36:37]
v_add_f32 v22, v34, v38
v_mov_b32 v32, v20
v_mov_b32 v33, v21
v_mov_b32 v34, v22
v_permlane32_swap_b32 v20, v32
v_permlane32_swap_b32 v21, v33
v_permlane32_swap_b32 v22, v34
v_pk_add_f32 v[20:21], v[20:21], v[32:33]
v_add_f32 v22, v22, v34
""")
    lnstats(20, 21, 26, 28, 25)
    a(f"""
v_fma_f32 v22, -v26, v17, v22
v_mul_f32 v22, v22, v28
v_mul_f32 v30, v26, v28
v_ashrrev_i32 v25, 31, v22
v_or_b32 v25, 0x80000000, v25
v_xor_b32 v22, v22, v25
v_and_b32 v22, 0xfffff800, v22
v_or_b32 v22, v22, v16
""")
    dp = [f"v_max_u32_dpp v22, v22, v22 row_ror:{r} row_mask:0xf bank_mask:0xf" for r in (8, 4, 2, 1)]
    for j in range(8):
        a(f"v_pk_fma_f32 {V(32+2*j,2)}, {V(80+2*j,2)}, v[28:29], v[30:31] op_sel_hi:[1,0,0] neg_lo:[0,0,1] neg_hi:[0,0,1]")
        if j % 2 == 1: a(dp[j // 2])
    for j in range(2): a(f"v_cvt_pk_bf16_f32 v{48+j}, v{32+2*j}, v{33+2*j}")
    a("v_readlane_b32 s67, v22, 0\nv_readlane_b32 s68, v22, 16")
    for j in range(2, 8): a(f"v_cvt_pk_bf16_f32 v{48+j}, v{32+2*j}, v{33+2*j}")
    a(f"""
s_max_u32 s67, s67, s68
s_andn2_b32 s68, 31, s67
s_mov_b32 s58, 1
s_mov_b32 s59, 1
s_lshl_b64 s[58:59], s[58:59], s68
s_lshl_b32 s57, s65, 11
s_add_u32 s57, s57, {WS_ROWS}
s_or_b32 s62, s3, s66
s_cmp_lg_u32 s62, 0
s_cbranch_scc1 L_nocand
v_mov_b32 v22, s67
s_lshl_b32 s62, s65, {CSH}
s_add_u32 s62, s62, {WS_CAND}
s_mov_b64 exec, 1
buffer_store_dwordx2 v[22:23], off, {S4(SWS)}, s62 sc1
L_nocand:
s_mov_b64 exec, s[58:59]
buffer_store_dwordx4 v[48:51], v7, {S4(SWS)}, s57 offen sc1
buffer_store_dwordx4 v[52:55], v7, {S4(SWS)}, s57 offen offset:16 sc1
buffer_store_dwordx4 v[64:67], v7, {S4(SWS)}, s57 offen offset:1024 sc1
buffer_store_dwordx4 v[68:71], v7, {S4(SWS)}, s57 offen offset:1040 sc1
s_mov_b64 exec, -1
s_barrier
""")
    stamp(10)
    for j in range(8):
        a(f"v_lshlrev_b32 v{32+2*j}, 16, v{48+j}\nv_and_b32 v{33+2*j}, 0xffff0000, v{48+j}")
    for j in range(8): a(f"v_pk_add_f32 {V(32+2*j,2)}, {V(32+2*j,2)}, {V(80+2*j,2)}")
    for j in range(8): a(f"v_cvt_pk_bf16_f32 v{56+j}, v{32+2*j}, v{33+2*j}")
    OSC = " sc1" if OPT["outsc"] else ""
    a(f"""
v_mov_b32 v24, {LDS_KEY}
v_and_b32 v25, 31, v0
v_mul_u32_u24 v25, 272, v25
v_and_b32 v26, 0xff, v7
v_add_u32 v25, v25, v26
ds_write_b128 v25, v[56:59] offset:{LDS_OT}
ds_write_b128 v25, v[60:63] offset:{LDS_OT+16}
v_lshrrev_b32 v25, 4, v0
s_lshl_b32 s62, s3, 3
v_add_u32 v25, s62, v25
v_and_b32 v26, 15, v0
v_lshlrev_b32 v26, 4, v26
v_mul_u32_u24 v27, 272, v25
v_add_u32 v27, v27, v26
s_lshl_b32 s62, s65, 5
v_add_u32 v25, s62, v25
v_lshl_add_u32 v26, v25, 10, v26
v_sub_u32 v25, 2047, v25
v_subrev_u32 v28, 4, v25
s_lshl_b32 s62, s66, 8
s_add_u32 s63, s62, 4096
s_waitcnt lgkmcnt(0)
s_barrier
ds_read_b32 v24, v24
ds_read_b128 v[56:59], v27 offset:{LDS_OT}
ds_read_b128 v[60:63], v27 offset:{LDS_OT+4*272}
{"s_cmp_ge_u32 s2, 224" + chr(10) + "s_cbranch_scc1 L_hout" + chr(10) + "s_barrier" + chr(10) + "L_hout:" if OPT["outpos"] == 0 else ""}
s_waitcnt lgkmcnt(0)
v_and_b32 v24, 0x7ff, v24
v_cmp_ne_u32 vcc, v24, v25
v_cmp_ne_u32 s[58:59], v24, v28
s_mov_b64 exec, {"vcc" if OPT["outpos"] != 2 else "1"}
buffer_store_dwordx4 v[56:59], v26, {S4(SOUT)}, s62 offen{OSC}
s_mov_b64 exec, {"s[58:59]" if OPT["outpos"] != 2 else "1"}
buffer_store_dwordx4 v[60:63], v26, {S4(SOUT)}, s63 offen{OSC}
s_mov_b64 exec, -1
""")
    stamp(11)
if ST:
    a("s_cmp_lg_u32 s3, 0\ns_cbranch_scc1 L_end")
    dump_stamps(1)
a("s_endpgm")

vm.reset(); lg.reset()
HK, HV, MD, MO = 128, 160, 224, 240
a(f"""
L_compute:
s_and_b32 s56, s3, 1
s_lshr_b32 s57, s3, 1
v_lshlrev_b32 v1, 4, v0
v_lshrrev_b32 v28, 5, v0
v_and_b32 v29, 15, v0
v_lshl_add_u32 v29, v28, 4, v29
v_lshlrev_b32 v29, 4, v29
v_add_u32 v3, 1024, v29
v_bfe_u32 v30, v0, 4, 1
v_lshl_add_u32 v2, v30, 17, v3
s_getpc_b64 s[62:63]
L_pc:
s_sub_u32 s62, s62, L_pc-L_start
s_subb_u32 s63, s63, 0
s_lshl_b32 s60, s3, 13
v_lshl_add_u32 v31, v0, 7, s60
v_min_u32 v31, L_end-L_start, v31
global_load_dword v15, v31, s[62:63]
v_mov_b32 v16, -1
v_mov_b32 v17, -1
v_mov_b32 v18, -1
v_mov_b32 v19, -1
s_lshl_b32 s58, s5, 1
s_add_u32 s58, s58, s57
s_lshl_b32 s58, s58, 7
s_lshl_b32 s60, s4, 1
s_add_u32 s58, s58, s60
s_add_u32 s58, s58, s56
s_lshl_b32 s58, s58, 11
s_add_u32 s58, s58, {WS_KV}
s_lshl_b32 s59, s4, 4
s_add_u32 s59, s59, s5
s_lshl_b32 s59, s59, 2
s_add_u32 s59, s59, s3
s_lshl_b32 s59, s59, 10
s_add_u32 s59, s59, {WS_O}
s_add_u32 s61, s58, 0x20000
s_add_u32 s64, s59, 0x8000
s_and_b32 s66, s2, 7
s_lshr_b32 s67, s2, 3
s_mul_i32 s65, s66, 28
s_add_u32 s65, s65, s67
s_lshl_b32 s66, s66, 2
s_add_u32 s66, s66, s67
s_add_u32 s66, s66, {224-28}
s_cmp_ge_u32 s67, 28
s_cselect_b32 s65, s66, s65
s_lshr_b32 s66, s5, 2
s_add_u32 s66, s66, s60
s_lshl_b32 s66, s66, 11
s_and_b32 s67, s5, 3
s_lshl_b32 s67, s67, 8
s_add_u32 s66, s66, s67
s_add_u32 s66, s66, {WS_ROWS}
s_waitcnt lgkmcnt(0)
s_load_dword s6, s[54:55], 0
""")
if OPT["qpre"]:
    a(f"""
s_add_u32 s60, s7, s3
s_and_b32 s60, s60, 7
s_lshl_b32 s60, s60, 6
v_add_u32 v20, s60, v0
v_mul_u32_u24 v20, 3072, v20
s_lshl_b32 s60, s5, 7
v_add_u32 v20, s60, v20
s_cmp_ge_u32 s3, {1 + OPT["map"]}
s_cbranch_scc1 L_noqpre
global_load_dword v15, v20, s[38:39]
L_noqpre:
""")
def prefetch():
    if OPT["pf"] & 1:
        a(f"""
s_lshr_b32 s60, s2, 3
s_lshl_b32 s60, s60, 1
s_add_u32 s60, s60, s56
s_mul_i32 s60, s60, {8*3584}
s_and_b32 s69, s2, 7
s_mul_i32 s69, s69, 448
s_andn2_b32 s69, s69, 127
s_add_u32 s60, s60, s69
v_lshrrev_b32 v20, 3, v0
v_mul_u32_u24 v20, 3584, v20
v_and_b32 v21, 7, v0
v_lshl_add_u32 v20, v21, 6, v20
v_add_u32 v20, s60, v20
s_cmp_eq_u32 s57, 0
s_cselect_b32 s70, s46, s48
s_cselect_b32 s71, s47, s49
global_load_dword v15, v20, s[70:71]
""")
    if OPT["pf"] & 2:
        a(f"""
s_lshr_b32 s60, s2, 3
s_lshl_b32 s60, s60, 2
s_add_u32 s60, s60, s3
s_lshl_b32 s60, s60, 12
v_lshl_add_u32 v20, v0, 6, s60
global_load_dword v15, v20, s[40:41]
""")
def wdload():
    srd(SFA, 50, 1792*1024)
    a(f"""
s_lshl_b32 s60, s65, 13
s_lshl_b32 s69, s3, 11
s_add_u32 s60, s60, s69
s_add_u32 m0, s69, {LDS_WD}
buffer_load_dwordx4 v1, {S4(SFA)}, s60 offen lds
buffer_load_dwordx4 v1, {S4(SFA)}, s60 offen offset:1024 lds
""")
srd(SWS, 54, 0x1000000)
if not OPT["nopre"]: a(f"""
buffer_store_dwordx4 v[16:19], v1, {S4(SWS)}, s58 offen sc1
buffer_store_dwordx4 v[16:19], v1, {S4(SWS)}, s58 offen offset:1024 sc1
buffer_store_dwordx4 v[16:19], v1, {S4(SWS)}, s61 offen sc1
buffer_store_dwordx4 v[16:19], v1, {S4(SWS)}, s61 offen offset:1024 sc1
buffer_store_dwordx4 v[16:19], v1, {S4(SWS)}, s59 offen sc1
buffer_store_dwordx4 v[16:19], v1, {S4(SWS)}, s64 offen sc1
s_cmp_lg_u32 s3, 0
s_cbranch_scc1 L_nopre
s_mov_b64 exec, 0xffff
buffer_store_dwordx4 v[16:19], v1, {S4(SWS)}, s66 offen sc1
buffer_store_dwordx4 v[16:19], v1, {S4(SWS)}, s66 offen offset:1024 sc1
s_mov_b64 exec, -1
L_nopre:
""")
srd(SOUT, 52, 0x200000)
a(f"""
v_and_b32 v29, 31, v0
s_lshl_b32 s60, s56, 5
v_add_u32 v29, s60, v29
v_bfe_u32 v30, v29, 1, 3
v_xor_b32 v30, v30, v28
v_lshlrev_b32 v31, 7, v29
v_lshl_add_u32 v4, v30, 4, v31
v_xor_b32 v5, 32, v4
v_xor_b32 v6, 64, v4
v_xor_b32 v7, 96, v4
v_lshlrev_b32 v14, 2, v29
v_add_u32 v14, {LDS_NM}, v14
v_bfe_u32 v29, v0, 2, 2
v_lshl_add_u32 v30, v28, 3, v29
v_lshlrev_b32 v30, 7, v30
v_lshrrev_b32 v29, 1, v29
v_xor_b32 v29, s57, v29
v_lshl_add_u32 v30, v29, 6, v30
v_and_b32 v29, 16, v0
v_lshl_add_u32 v30, v29, 1, v30
v_and_b32 v29, 3, v0
v_lshl_add_u32 v30, v29, 3, v30
v_add_u32 v8, {LDS_W}, v30
v_add_u32 v9, {LDS_W+65536}, v30
v_mov_b32 v10, 0
v_mov_b32 v11, 0
v_mov_b32 v12, 0
v_mov_b32 v13, 0
s_mov_b32 s68, {ONES}
; masks
v_and_b32 v29, 31, v0
v_lshlrev_b32 v30, 2, v28
v_sub_u32 v29, v29, v30
v_mov_b32 v30, 0xf149f2ca
""")
for j in range(16):
    a(f"v_cmp_le_i32 vcc, {8*(j>>2)+(j&3)}, v29\nv_cndmask_b32_e64 v{MD+j}, v30, 0, vcc\nv_cndmask_b32 v{MO+j}, 0, v30, vcc")
a(f"""
s_lshl_b32 s60, s5, 2
s_add_u32 s60, s60, s3
s_lshl_b32 s60, s60, 5
s_add_u32 s60, s60, s4
s_lshl_b32 s60, s60, 12
s_add_u32 s60, s60, {WS_KV - 4*4096}
""")
for p in range(4):
    a(f"s_add_u32 s{96+p}, s60, {p*4096}\ns_cmp_ge_u32 s4, {4-p}\ns_cselect_b32 s{96+p}, s{96+p}, 0x7f000000\ns_cselect_b32 s69, s68, 0")
    for r in range(16): a(f"v_mov_b32 v{HV+16*p+r}, s69")
a("s_waitcnt lgkmcnt(0)\ns_mul_i32 s6, s6, 0x9E3779B1\ns_add_u32 s6, s6, 0x7F4A7C15")
for r in (21, 22, 23, 25, 26, 27): a(f"v_mov_b32 v{r}, 0")

XF, WK, WV, AK, AV, AQ, RSV, KF, VF = 32, 48, 64, 80, 96, 112, 112, 64, 72
def wslot(j):
    s = j % 5
    return (9, 0) if s == 4 else (8, s * 16384)
def rdKV(i):
    c, ks = i >> 2, i & 3
    va, off = wslot(c)
    a(f"ds_read_b128 {V(XF+4*ks,4)}, v{4+ks} offset:{c*8192}"); lg.add(i)
    for si, R in ((0, WK), (1, WV)):
        for e in range(2):
            a(f"ds_read_b64_tr_b16 {V(R+4*ks+2*e,2)}, v{va} offset:{off+si*8192+ks*2048+e*512}"); lg.add(i)
def cmpKV(i):
    ks = i & 3
    mfma32(AK, WK+4*ks, XF+4*ks, None if i == 0 else AK)
    if not OPT["nodot"]: a(f"v_dot2c_f32_bf16 v10, s68, v{WK+4*ks}\nv_dot2c_f32_bf16 v12, s68, v{WV+4*ks}\nv_dot2c_f32_bf16 v11, s68, v{WK+4*ks+1}\nv_dot2c_f32_bf16 v13, s68, v{WV+4*ks+1}")
    mfma32(AV, XF+4*ks, WV+4*ks, None if i == 0 else AV)
    if not OPT["nodot"]: a(f"v_dot2c_f32_bf16 v10, s68, v{WK+4*ks+2}\nv_dot2c_f32_bf16 v12, s68, v{WV+4*ks+2}\nv_dot2c_f32_bf16 v11, s68, v{WK+4*ks+3}\nv_dot2c_f32_bf16 v13, s68, v{WV+4*ks+3}")
a("s_barrier")
stamp(1)
rdKV(0); rdKV(1)
for i in range(32):
    nx = i + 2
    if nx < 32 and nx % 4 == 0:
        c = nx >> 2
        if c == 3: a("s_waitcnt vmcnt(0)")
        a("s_waitcnt lgkmcnt(0)\ns_barrier")
        if c == 3:
            a(f"""
s_cmp_lg_u32 s3, 0
s_cbranch_scc1 L_noflag
v_mov_b32 v28, s6
s_lshl_b32 s60, s2, 2
s_add_u32 s60, s60, {WS_FLAGS}
s_mov_b64 exec, 1
buffer_store_dword v28, off, {S4(SWS)}, s60 sc1
s_mov_b64 exec, -1
L_noflag:
v_mov_b32 v17, 0
v_mov_b32 v18, 0
v_mov_b32 v19, 0
""")
        if c == 7: stamp(2)
    else:
        lg.wait(i)
    if nx < 32: rdKV(nx)
    if i == 30:
        a(f"""
ds_read_b32 v24, v14
ds_read_b32 v14, v14 offset:{LDS_RS-LDS_NM}
v_lshrrev_b32 v28, 5, v0
s_lshl_b32 s60, s56, 7
s_add_u32 s60, s60, {LDS_RS}
v_lshl_add_u32 v28, v28, 4, s60
""")
        lg.add("st"); lg.add("st")
        for q in range(4): a(f"ds_read_b128 {V(RSV+4*q,4)}, v28 offset:{q*32}"); lg.add("st")
    cmpKV(i)
a(f"""
v_add_f32 v10, v10, v11
v_add_f32 v12, v12, v13
v_and_b32 v11, 0xffff0000, v10
v_and_b32 v13, 0xffff0000, v12
v_sub_f32 v10, v10, v11
v_sub_f32 v12, v12, v13
v_cvt_pk_bf16_f32 v16, v11, v10
v_cvt_pk_bf16_f32 v20, v13, v12
s_waitcnt lgkmcnt(0)
""")
mfma32(AK, 16, 24, AK)
mfma32(AV, 24, 20, AV)
a(f"s_movk_i32 s60, {WS_FLAGS}\nbuffer_load_dwordx4 v[28:31], v1, {S4(SWS)}, s60 offen sc1")
a("v_mov_b32 v10, 0\nv_mov_b32 v11, 0")
for j in range(8): a(f"v_pk_mul_f32 {V(AK+2*j,2)}, {V(AK+2*j,2)}, v[14:15] op_sel_hi:[1,0]")
for j in range(8): a(f"v_cvt_pk_bf16_f32 v{KF+j}, v{AK+2*j}, v{AK+2*j+1}")
a(f"buffer_store_dwordx4 {V(KF,4)}, v1, {S4(SWS)}, s58 offen sc1\nbuffer_store_dwordx4 {V(KF+4,4)}, v1, {S4(SWS)}, s61 offen sc1")
for j in range(8): a(f"v_pk_mul_f32 {V(AV+2*j,2)}, {V(AV+2*j,2)}, {V(RSV+2*j,2)}")
for j in range(8): a(f"v_cvt_pk_bf16_f32 v{VF+j}, v{AV+2*j}, v{AV+2*j+1}")
a(f"buffer_store_dwordx4 {V(VF,4)}, v2, {S4(SWS)}, s58 offen sc1\nbuffer_store_dwordx4 {V(VF+4,4)}, v2, {S4(SWS)}, s58 offen offset:512 sc1")
stamp(3)
lg.reset()
OK_, OA, QF, P, OV, S0, S1, OB = 32, 40, 56, 64, 80, 96, 112, 16
def rdQ(i):
    c, ks = i >> 2, i & 3
    va, off = wslot(8 + (i >> 3))
    a(f"ds_read_b128 {V(XF+4*ks,4)}, v{4+ks} offset:{c*8192}"); lg.add(i)
    for e in range(2):
        a(f"ds_read_b64_tr_b16 {V(WK+4*ks+2*e,2)}, v{va} offset:{off+(i&7)*2048+e*512}"); lg.add(i)
a("s_barrier")
rdQ(0); rdQ(1); rdQ(2)
for i in range(32):
    nx = i + 3; ks = i & 3
    if nx < 32 and nx % 8 == 0:
        a("s_waitcnt lgkmcnt(0)\ns_barrier")
    else:
        lg.wait(i)
    if nx < 32: rdQ(nx)
    mfma32(AQ, WK+4*ks, XF+4*ks, None if i == 0 else AQ)
    if not OPT["nodot"]: a(f"v_dot2c_f32_bf16 v10, s68, v{WK+4*ks}\nv_dot2c_f32_bf16 v11, s68, v{WK+4*ks+1}\nv_dot2c_f32_bf16 v10, s68, v{WK+4*ks+2}\nv_dot2c_f32_bf16 v11, s68, v{WK+4*ks+3}")
    if i < 8: a(f"v_mov_b32 v{OV+2*i}, s68\nv_mov_b32 v{OV+2*i+1}, s68")
    if i == 8:
        a(f"""
s_lshl_b32 s60, s57, 2
s_add_u32 s60, s60, s56
s_lshl_b32 s69, s60, 10
s_lshl_b32 s60, s60, 11
s_add_u32 s60, s60, {LDS_KX}
s_add_u32 s69, s69, {LDS_QX}
v_add_u32 v12, s60, v1
v_bfe_u32 v13, v0, 4, 1
v_lshl_add_u32 v13, v13, 12, v3
v_add_u32 v13, s60, v13
""")
    if i == 16:
        a(f"ds_write_b128 v12, {V(KF,4)}\nds_write_b128 v12, {V(KF+4,4)} offset:4096"); lg.add("x"); lg.add("x")
    if i == 18:
        a(f"ds_write_b128 v13, {V(VF,4)}\nds_write_b128 v13, {V(VF+4,4)} offset:512\nv_add_u32 v12, s69, v1"); lg.add("x"); lg.add("x")
a(f"""
v_add_f32 v10, v10, v11
v_mul_f32 v14, 0x3eb8aa3b, v14
v_and_b32 v11, 0xffff0000, v10
v_sub_f32 v10, v10, v11
v_cvt_pk_bf16_f32 v16, v11, v10
""")
mfma32(AQ, 16, 24, AQ)
def fcheck():
    a("v_xor_b32 v28, s6, v28\nv_xor_b32 v29, s6, v29\nv_xor_b32 v30, s6, v30\nv_xor_b32 v31, s6, v31\nv_or3_b32 v28, v28, v29, v30\nv_or_b32 v28, v28, v31\nv_cmp_ne_u32 vcc, 0, v28")
a("s_waitcnt vmcnt(4)")
fcheck()
a("s_cbranch_vccnz L_flagretry\nL_flagok:")
sv = a; a = tail
a(f"L_flagretry:\ns_movk_i32 s60, {WS_FLAGS}")
poll(lambda: a(f"buffer_load_dwordx4 v[28:31], v1, {S4(SWS)}, s60 offen sc1"), fcheck)
a("s_branch L_flagok")
a = sv
vm.reset()
def halo(p, track=True):
    for e in range(2):
        a(f"buffer_load_dwordx4 {V(HK+8*p+4*e,4)}, v1, {S4(SWS)}, s{96+p} offen offset:{e*2048} sc1")
        if track: vm.add(p)
    a("s_mov_b64 exec, s[100:101]")
    for e in range(4):
        a(f"buffer_load_dwordx4 {V(HV+16*p+4*e,4)}, v3, {S4(SWS)}, s{96+p} offen offset:{(e>>1)*2048+(e&1)*512} sc1")
        if track: vm.add(p)
    a("s_mov_b64 exec, -1")
def hcheck(p):
    k = HK + 8*p; v = HV + 16*p
    a(f"v_max3_u32 v4, v{k}, v{k+4}, v{v}\nv_max3_u32 v5, v{v+4}, v{v+8}, v{v+12}\nv_max_u32 v4, v4, v5\nv_cmp_eq_u32 vcc, -1, v4")
a("s_mov_b32 s100, 0xffff\ns_mov_b32 s101, 0xffff")
if STAGE >= 2:
    for p in (3, 2, 1, 0): halo(p)
for j in range(8): a(f"v_pk_mul_f32 {V(AQ+2*j,2)}, {V(AQ+2*j,2)}, v[14:15] op_sel_hi:[1,0]")
for j in range(8): a(f"v_cvt_pk_bf16_f32 v{KF+j}, v{AQ+2*j}, v{AQ+2*j+1}")
a(f"""
ds_write_b128 v12, {V(KF,4)}
ds_write_b128 v12, {V(KF+4,4)} offset:2048
s_lshl_b32 s60, s3, 12
s_add_u32 s60, s60, {LDS_KX}
v_add_u32 v12, s60, v1
v_add_u32 v13, s60, v3
s_lshl_b32 s60, s3, 11
s_add_u32 s60, s60, {LDS_QX}
v_add_u32 v11, s60, v1
s_waitcnt lgkmcnt(0)
s_barrier
""")
stamp(4)
a(f"""
ds_read_b128 {V(OK_,4)}, v12
ds_read_b128 {V(QF,4)}, v11
ds_read_b128 {V(OK_+4,4)}, v12 offset:2048
ds_read_b128 {V(QF+4,4)}, v11 offset:1024
s_mov_b64 exec, s[100:101]
ds_read_b128 {V(OV,4)}, v13
ds_read_b128 {V(OV+4,4)}, v13 offset:512
ds_read_b128 {V(OV+8,4)}, v13 offset:2048
ds_read_b128 {V(OV+12,4)}, v13 offset:2560
s_mov_b64 exec, -1
""")
if STAGE == 1:
    a(f"s_waitcnt lgkmcnt(0)\nbuffer_store_dwordx4 {V(QF,4)}, v1, {S4(SWS)}, s59 offen\nbuffer_store_dwordx4 {V(QF+4,4)}, v1, {S4(SWS)}, s64 offen")
if STAGE >= 2:
    blocks = [(0, OK_, OV, MD, None), (1, OK_+4, OV+8, MD, None), (1, OK_, OV, None, None)]
    for p in (3, 2, 1, 0):
        first = True
        for i in (2*p+1, 2*p):
            for qt in (0, 1):
                if qt == 1 and i == 0: continue
                m = MO if (i == qt) else None
                blocks.append((qt, HK+4*i, HV+8*i, m, p if first else None)); first = False
    assert len(blocks) == 18
    Sb = (S0, S1); Oacc = (OA, OB); started = [False, False]
    def QK(i):
        qt, k, v, m, chk = blocks[i]
        global a
        if chk is not None:
            vm.wait(chk)
            hcheck(chk)
            a(f"s_cbranch_vccnz L_hretry{chk}\nL_hok{chk}:")
            sv = a; a = tail
            a(f"L_hretry{chk}:")
            poll(lambda: halo(chk, False), lambda: hcheck(chk))
            a(f"s_branch L_hok{chk}")
            a = sv
            if chk == 3: stamp(5)
        mfma32(Sb[i & 1], k, QF+4*qt, m)
    def PV(i, e):
        qt, k, v, m, chk = blocks[i]
        mfma32(Oacc[qt], v+4*e, P+4*e, Oacc[qt] if started[qt] else None); started[qt] = True
    a("s_waitcnt lgkmcnt(6)")
    QK(0)
    a("s_waitcnt lgkmcnt(0)")
    for i in range(18):
        cur = Sb[i & 1]
        ex = lambda r: [a(f"v_exp_f32 v{cur+j}, v{cur+j}") for j in r]
        cv = lambda r: [a(f"v_cvt_pk_bf16_f32 v{P+j}, v{cur+2*j}, v{cur+2*j+1}") for j in r]
        if i + 1 < 18: QK(i + 1)
        ex(range(0, 4))
        if i > 0: PV(i - 1, 1)
        ex(range(4, 9)); cv(range(0, 4)); ex(range(9, 11))
        PV(i, 0)
        ex(range(11, 16)); cv(range(4, 8))
    PV(17, 1)
    a("L_attn_done:")
    a(f"""
s_mov_b32 s60, 0x21800000
v_subrev_u32 v4, s60, v{OB+8}
v_subrev_u32 v5, s60, v{OA+8}
v_max_u32 v4, v4, v5
v_cmp_lt_u32 vcc, 0x3c000000, v4
v_rcp_f32 v6, v{OB+8}
v_rcp_f32 v8, v{OA+8}
""")
    a("L_attn_norm:")
    for (acc, rc, so) in ((OB, 6, 64), (OA, 8, 59)):
        for j in range(4): a(f"v_pk_mul_f32 {V(acc+2*j,2)}, {V(acc+2*j,2)}, v[{rc}:{rc+1}] op_sel_hi:[1,0]")
        for j in range(4): a(f"v_cvt_pk_bf16_f32 v{acc+8+j}, v{acc+2*j}, v{acc+2*j+1}")
        a(f"buffer_store_dwordx4 {V(acc+8,4)}, v1, {S4(SWS)}, s{so} offen sc1")
    stamp(6)
if STAGE >= 3:
    a(f"""
s_barrier
s_cmp_ge_u32 s65, 224
s_cbranch_scc1 L_down
""")
    srd(SFA, 46, 512*3584); srd(SFB, 48, 512*3584)
    a(f"""
v_mul_u32_u24 v4, 3584, v0
s_mul_i32 s60, s3, {128*3584}
s_lshl_b32 s61, s65, 4
s_add_u32 s60, s60, s61
s_add_u32 s61, s60, {64*3584}
s_lshl_b32 s62, s3, 15
s_add_u32 s62, s62, {LDS_GU}
v_lshrrev_b32 v5, 4, v0
v_bfe_u32 v6, v0, 2, 2
v_lshl_add_u32 v6, v5, 3, v6
v_lshlrev_b32 v6, 4, v6
v_and_b32 v7, 1, v0
v_lshl_add_u32 v6, v7, 3, v6
v_and_b32 v7, 2, v0
v_lshl_add_u32 v6, v7, 10, v6
v_add_u32 v6, s62, v6
v_lshlrev_b32 v5, 4, v5
s_lshl_b32 s63, s3, 8
s_add_u32 s63, s63, {LDS_WD}
v_lshl_add_u32 v7, v0, 2, s63
ds_read2st64_b32 v[96:97], v7 offset0:0 offset1:4
ds_read2st64_b32 v[98:99], v7 offset0:8 offset1:12
ds_read2st64_b32 v[100:101], v7 offset0:16 offset1:20
ds_read2st64_b32 v[102:103], v7 offset0:24 offset1:28
v_lshrrev_b32 v12, 3, v0
s_lshl_b32 s63, s3, 3
v_add_u32 v12, s63, v12
v_mul_u32_u24 v12, 14336, v12
v_and_b32 v13, 7, v0
v_lshl_add_u32 v12, v13, 3, v12
v_lshlrev_b32 v11, 2, v13
v_add_u32 v11, {LDS_RED}, v11
s_lshl_b32 s63, s3, 6
s_add_u32 s63, s63, {LDS_RED}
v_and_b32 v10, 48, v0
v_add_u32 v10, s63, v10
s_lshl_b32 s67, s65, 6
s_add_u32 s67, s67, {WS_PART}
v_mov_b32 v14, s6
s_lshr_b32 s63, s6, 12
v_mov_b32 v15, s63
s_waitcnt lgkmcnt(0)
""")
    for j in range(8):
        a(f"v_lshlrev_b32 v{80+2*j}, 16, v{96+j}\nv_and_b32 v{81+2*j}, 0xffff0000, v{96+j}")
    GUP = [(1, 1, 4, 4), (4, 4, 4, 4), (0, 0, 0, 0), (1, 1, 1, 1), (1, 4, 4, 4), (0, 1, 1, 4)][OPT["gupos"]]
    for bb in range(5):
        if bb: a("s_barrier")
        for i in range(4):
            if GUP[i] == bb:
                a(f"s_add_u32 m0, s62, {i*1024}\nbuffer_load_dwordx4 v4, {S4(SFA if i < 2 else SFB)}, s{60+(i&1)} offen lds")
    stamp(7)
    def cand(post=None):
        a(f"v_lshlrev_b32 v7, {CSH}, v0\ns_mov_b32 s60, {WS_CAND}")
        poll(lambda: a(f"buffer_load_dwordx2 v[8:9], v7, {S4(SWS)}, s60 offen sc1"), lambda: a("v_cmp_ne_u32 vcc, s6, v9"))
        if post: post()
        for r in (8, 4, 2, 1): a(f"v_max_u32_dpp v8, v8, v8 row_ror:{r} row_mask:0xf bank_mask:0xf")
        a(f"""
v_readlane_b32 s60, v8, 0
v_readlane_b32 s61, v8, 16
v_readlane_b32 s62, v8, 32
v_readlane_b32 s63, v8, 48
s_max_u32 s60, s60, s61
s_max_u32 s62, s62, s63
s_max_u32 s69, s60, s62
s_andn2_b32 s70, 0x7ff, s69
s_lshr_b32 s60, s70, 5
s_lshl_b32 s60, s60, 11
s_add_u32 s60, s60, {WS_ROWS}
""")
    def trr():
        for s in range(4):
            for e in range(2):
                a(f"ds_read_b64_tr_b16 {V(32+4*s+2*e,2)}, v6 offset:{s*512+e*64}")
    cand(trr)
    stamp(8)
    a(f"s_lshl_b32 s61, s3, 8\ns_add_u32 s60, s60, s61")
    def rl():
        for s in range(4): a(f"buffer_load_dwordx4 {V(48+4*s,4)}, v5, {S4(SWS)}, s60 offen offset:{s*64} sc1")
    rc = lambda: a("v_max3_u32 v8, v48, v52, v56\nv_max_u32 v8, v8, v60\nv_cmp_eq_u32 vcc, -1, v8")
    rl()
    a(f"v_mov_b32 v8, {LDS_KEY}\nv_mov_b32 v9, s69\nds_write_b32 v8, v9")
    if OPT["outpos"] != 0: a("s_waitcnt lgkmcnt(0)\ns_barrier")
    a("s_waitcnt vmcnt(0)")
    rc()
    a("s_cbranch_vccnz L_rretry\nL_rok:")
    sv = a; a = tail
    a("L_rretry:")
    poll(rl, rc)
    a("s_branch L_rok")
    a = sv
    stamp(9)
    a("s_waitcnt lgkmcnt(0)")
    for s in range(4): mfma16(64, 32+4*s, 48+4*s, None if s == 0 else 64)
    a(f"""
s_mov_b32 exec_lo, 0x00010001
s_mov_b32 exec_hi, 0x00010001
ds_write_b128 v10, v[64:67]
s_mov_b64 exec, -1
s_waitcnt lgkmcnt(0)
s_barrier
ds_read2_b32 v[16:17], v11 offset0:0 offset1:8
ds_read2_b32 v[18:19], v11 offset0:16 offset1:24
ds_read2_b32 v[20:21], v11 offset0:32 offset1:40
ds_read2_b32 v[22:23], v11 offset0:48 offset1:56
s_movk_i32 s63, 0xfff
s_waitcnt lgkmcnt(2)
v_pk_add_f32 v[16:17], v[16:17], v[18:19]
s_waitcnt lgkmcnt(0)
v_pk_add_f32 v[20:21], v[20:21], v[22:23]
v_pk_add_f32 v[16:17], v[16:17], v[20:21]
v_cvt_pk_bf16_f32 v20, v16, v17
v_lshlrev_b32 v16, 16, v20
v_mul_f32 v22, 0xbfb8aa3b, v16
v_exp_f32 v22, v22
v_and_b32 v17, 0xffff0000, v20
v_add_f32 v22, 1.0, v22
v_rcp_f32 v22, v22
v_mul_f32 v16, v16, v22
v_cvt_pk_bf16_f32 v16, v16, v16
v_and_b32 v16, 0xffff0000, v16
v_mul_f32 v16, v16, v17
v_cvt_pk_bf16_f32 v16, v16, v16
v_and_b32 v16, 0xffff0000, v16
""")
    for j in range(8):
        for e in range(2):
            op = "v_mul_f32_dpp" if j < 2 else "v_fmac_f32_dpp"
            a(f"{op} v{18+2*(j&1)+e}, v16, v{80+2*j+e} row_newbcast:{j} row_mask:0xf bank_mask:0xf")
    a(f"""
v_pk_add_f32 v[18:19], v[18:19], v[20:21]
v_bfi_b32 v18, s63, v14, v18
v_bfi_b32 v19, s63, v15, v19
buffer_store_dwordx2 v[18:19], v12, {S4(SWS)}, s67 offen sc1
{"s_barrier" if OPT["outpos"] == 0 else ""}
""")
    stamp(10)
    a("s_branch L_cend")
    a(f"""
L_down:
s_sub_u32 s65, s65, 224
s_mul_i32 s67, s65, 14336
s_mul_i32 s61, s3, {224*16}
s_add_u32 s67, s67, s61
s_add_u32 s67, s67, {WS_PART}
s_lshl_b32 s65, s65, 5
s_lshr_b32 s68, s6, 12
s_and_b32 s61, s6, 0xfff
s_and_b32 s62, s68, 0xfff
v_mov_b32 v52, s61
v_mov_b32 v53, s62
v_mov_b32 v54, s61
v_mov_b32 v55, s62
v_and_b32 v14, 7, v0
v_lshlrev_b32 v14, 2, v14
v_and_b32 v10, 3, v0
v_lshlrev_b32 v10, 4, v10
v_bfe_u32 v11, v0, 4, 1
v_lshl_add_u32 v10, v11, 3, v10
v_lshrrev_b32 v11, 5, v0
v_lshl_add_u32 v10, v11, 2, v10
s_lshl_b32 s61, s3, 6
s_add_u32 s61, s61, {LDS_RED}
v_add_u32 v10, s61, v10
v_lshlrev_b32 v11, 3, v0
v_add_u32 v11, {LDS_RED}, v11
s_mov_b32 s64, 0xfffff000
s_barrier
s_barrier
s_barrier
s_barrier
""")
    stamp(7)
    cand()
    stamp(8)
    a(f"""
s_add_u32 s60, s60, s65
v_mov_b32 v8, {LDS_KEY}
v_mov_b32 v9, s69
ds_write_b32 v8, v9
s_waitcnt lgkmcnt(0)
s_barrier
""")
    poll(lambda: a(f"buffer_load_dword v32, v14, {S4(SWS)}, s60 offen sc1\nbuffer_load_dword v33, v14, {S4(SWS)}, s60 offen offset:1024 sc1"),
         lambda: a("v_max_u32 v8, v32, v33\nv_cmp_eq_u32 vcc, -1, v8"))
    a(f"""
s_and_b32 s61, s69, 0xfffff800
s_not_b32 s62, s61
s_xor_b32 s63, s61, 0x80000000
s_cmp_ge_u32 s61, 0x80000000
s_cselect_b32 s61, s63, s62
v_mov_b32 v34, s61
v_cvt_pk_bf16_f32 v34, v34, v34
v_and_b32 v34, 0xffff0000, v34
v_mul_f32 v34, 0xbfb8aa3b, v34
v_exp_f32 v34, v34
v_add_f32 v34, 1.0, v34
v_rcp_f32 v34, v34
v_cvt_pk_bf16_f32 v34, v34, v34
v_and_b32 v34, 0xffff0000, v34
v_lshlrev_b32 v36, 16, v32
v_and_b32 v37, 0xffff0000, v32
v_lshlrev_b32 v38, 16, v33
v_and_b32 v39, 0xffff0000, v33
""")
    def pl():
        for i in range(3): a(f"buffer_load_dwordx4 {V(40+4*i,4)}, v1, {S4(SWS)}, s67 offen offset:{i*1024} sc1")
        a(f"s_mov_b64 exec, 0xffffffff\nbuffer_load_dwordx4 v[52:55], v1, {S4(SWS)}, s67 offen offset:3072 sc1\ns_mov_b64 exec, -1")
    def pc():
        for i in range(4):
            a(f"v_bitop3_b32 v{16+2*i}, v{40+4*i}, v{42+4*i}, s6 bitop3:0x7e\nv_bitop3_b32 v{17+2*i}, v{41+4*i}, v{43+4*i}, s68 bitop3:0x7e")
        a("v_or3_b32 v16, v16, v17, v18\nv_or3_b32 v19, v19, v20, v21\nv_or3_b32 v16, v16, v22, v23\nv_bitop3_b32 v16, v16, v19, s64 bitop3:0x54\nv_cmp_ne_u32 vcc, 0, v16")
    if OPT["pdelay"]: a(f"s_sleep {OPT['pdelay']}")
    poll(pl, pc)
    stamp(9)
    for r in range(40, 56): a(f"v_and_b32 v{r}, s64, v{r}")
    a(f"""
v_pk_add_f32 v[40:41], v[40:41], v[44:45]
v_pk_add_f32 v[42:43], v[42:43], v[46:47]
v_pk_add_f32 v[48:49], v[48:49], v[52:53]
v_pk_add_f32 v[50:51], v[50:51], v[54:55]
v_pk_add_f32 v[40:41], v[40:41], v[48:49]
v_pk_add_f32 v[42:43], v[42:43], v[50:51]
v_permlane32_swap_b32 v40, v41
v_permlane32_swap_b32 v42, v43
v_add_f32 v40, v40, v41
v_add_f32 v42, v42, v43
v_permlane16_swap_b32 v40, v42
v_add_f32 v40, v40, v42
v_add_f32_dpp v40, v40, v40 row_ror:4 row_mask:0xf bank_mask:0xf
v_add_f32_dpp v40, v40, v40 row_ror:8 row_mask:0xf bank_mask:0xf
ds_write_b32 v10, v40
s_waitcnt lgkmcnt(0)
s_barrier
s_cmp_lg_u32 s3, 0
s_cbranch_scc1 L_dn_other
s_mov_b64 exec, 0xff
ds_read2_b64 v[16:19], v11 offset0:0 offset1:8
ds_read2_b64 v[20:23], v11 offset0:16 offset1:24
s_lshl_b32 s60, s70, 10
s_add_u32 s60, s60, s65
s_waitcnt lgkmcnt(0)
v_pk_add_f32 v[16:17], v[16:17], v[18:19]
v_pk_add_f32 v[20:21], v[20:21], v[22:23]
v_pk_add_f32 v[16:17], v[16:17], v[20:21]
v_cvt_pk_bf16_f32 v20, v16, v17
v_lshlrev_b32 v16, 16, v20
v_and_b32 v17, 0xffff0000, v20
v_pk_mul_f32 v[16:17], v[16:17], v[34:35] op_sel_hi:[1,0]
v_cvt_pk_bf16_f32 v20, v16, v17
v_lshlrev_b32 v16, 16, v20
v_and_b32 v17, 0xffff0000, v20
v_pk_add_f32 v[16:17], v[16:17], v[36:37]
v_cvt_pk_bf16_f32 v20, v16, v17
v_lshlrev_b32 v16, 16, v20
v_and_b32 v17, 0xffff0000, v20
v_pk_add_f32 v[16:17], v[16:17], v[38:39]
v_cvt_pk_bf16_f32 v20, v16, v17
buffer_store_dword v20, v14, {S4(SOUT)}, s60 offen sc1
s_cmp_lg_u32 s65, 0
s_cbranch_scc1 L_dn_other
s_mov_b64 exec, 1
v_mov_b32 v20, s6
buffer_store_dword v20, off, {S4(SWS)}, 0 sc1
L_dn_other:
s_mov_b64 exec, -1
""")
    stamp(10)
    a("L_cend:")
stamp(11)
if ST:
    a("s_cmp_lg_u32 s3, 0\ns_cbranch_scc1 L_end")
    dump_stamps(0)
a("s_endpgm")
lines = a.L + tail.L + ["L_end:"]
lines = fix_hazards(lines)
print(wrap("\n".join(lines), 256, 512, 163840))
```

```python
import sys
from asmlib import *
OPT = dict(stamps=0, stage=9, bound=20000, rot=1, seq=0, ahead=14, sb=0, map=0, csh=7, pt=7, worot=1, hp="26,E,X,1", bq1=10,
           kvpt=0, cpf=1, gu="2,2", outpos=1, fine=0, slow=1, force=0, ppt=1, exp=0)
for x in sys.argv[1:]:
    k, v = x.split("="); assert k in OPT, k
    OPT[k] = v if isinstance(OPT[k], str) else int(v, 0)
ST = OPT["stamps"]; STAGE = OPT["stage"]; BOUND = OPT["bound"]; CSH = OPT["csh"]

WS_STATS=0x2000; WS_CAND=0x30000; WS_ROWS=0x40000; WS_PART=0x80000
WS_KV=0x100000; WS_O=0x580000; WS_STAMP=0x800000
KVR=2304; OR_=1280
LDS_W=65536; LDS_KX=131072; LDS_QX=147456; LDS_NM=147456; LDS_RS=147712; LDS_MK=155648; LDS_WD=155648
LDS_GU=131072; LDS_PRE=147456; LDS_KEY=151552; LDS_RED=151808; LDS_OX=0; LDS_OT=32768
SX, SW, SWS, SWO, SOUT, SFA, SFB = 8, 12, 16, 20, 24, 28, 32
def S4(n): return f"s[{n}:{n+3}]"
def V(n, k): return f"v[{n}:{n+k-1}]"
ONES = 0x3F803F80
a = Asm()
tail = Asm(); tail.nlab = 1000
cold = Asm(); cold.nlab = 2000

class Cnt:
    def __init__(s, name, mx): s.ops = []; s.name = name; s.mx = mx
    def add(s, tag, n=1): s.ops += [tag] * n
    def n(s, tag):
        idx = max(i for i, t in enumerate(s.ops) if t == tag)
        return min(len(s.ops) - 1 - idx, s.mx)
    def wait(s, tag): a(f"s_waitcnt {s.name}({s.n(tag)})")
    def reset(s): s.ops = []

def stamp(i, f=0):
    if ST and (f == OPT["fine"] or (f == 0 and not (7 <= i <= 10 and INC[0]))): a(f"s_memrealtime s[{72+2*i}:{73+2*i}]")
INC = [False]
def cstamp(i):
    if ST and OPT["fine"] == 3: a(f"s_memtime s[{72+2*i}:{73+2*i}]")
def dump_stamps(base):
    if not ST: return
    a("s_waitcnt lgkmcnt(0)")
    a("s_mov_b64 exec, -1")
    for i in range(12):
        a(f"v_writelane_b32 v4, s{72+2*i}, {i}\nv_writelane_b32 v5, s{73+2*i}, {i}")
    a(f"""
v_lshlrev_b32 v6, 3, v0
s_mul_i32 s56, s2, 192
s_add_u32 s56, s56, {WS_STAMP + base*96}
s_mov_b64 exec, 0xfff
buffer_store_dwordx2 v[4:5], v6, {S4(SWS)}, s56 offen
s_mov_b64 exec, -1
""")
def srd(n, lo, size):
    a(f"s_mov_b32 s{n}, s{lo}\ns_mov_b32 s{n+1}, s{lo+1}\ns_mov_b32 s{n+2}, {size}\ns_mov_b32 s{n+3}, 0x00020000")
def lnstats(s1, s2, m, rs, t):
    a(f"""
v_mul_f32 v{m}, 0x3b000000, v{s1}
v_mul_f32 v{s2}, 0x3b000000, v{s2}
v_fma_f32 v{s2}, -v{m}, v{m}, v{s2}
v_max_f32 v{s2}, 0, v{s2}
v_cvt_pk_bf16_f32 v{t}, v{m}, v{s2}
v_and_b32 v{s2}, 0xffff0000, v{t}
v_add_f32 v{s2}, 0x3727c5ac, v{s2}
v_lshlrev_b32 v{m}, 16, v{t}
v_cvt_pk_bf16_f32 v{s2}, v{s2}, v{s2}
v_and_b32 v{s2}, 0xffff0000, v{s2}
v_sqrt_f32 v{s2}, v{s2}
v_cvt_pk_bf16_f32 v{s2}, v{s2}, v{s2}
v_and_b32 v{s2}, 0xffff0000, v{s2}
v_rcp_f32 v{rs}, v{s2}
""")
def poll(loads, check, cnt=71):
    L = a.lab("poll"); D = a.lab("polld")
    a(f"s_movk_i32 s{cnt}, {BOUND}\n{L}:")
    loads()
    a("s_waitcnt vmcnt(0)")
    check()
    a(f"s_cbranch_vccz {D}\ns_sub_u32 s{cnt}, s{cnt}, 1\ns_cbranch_scc0 {L}\n{D}:")
def mfma32(d, A, B, C):
    c = "0" if C is None else V(C, 16)
    a(f"v_mfma_f32_32x32x16_bf16 {V(d,16)}, {V(A,4)}, {V(B,4)}, {c}")
def mfma16(d, A, B, C):
    c = "0" if C is None else V(C, 4)
    a(f"v_mfma_f32_16x16x32_bf16 {V(d,4)}, {V(A,4)}, {V(B,4)}, {c}")
def sum3(dst, regs, first=None):
    r = [f"v{x}" for x in regs]
    if first is not None: r = [first] + r
    out = [f"v_add3_u32 v{dst}, {r[0]}, {r[1]}, {r[2]}"]; r = r[3:]
    while len(r) >= 2: out.append(f"v_add3_u32 v{dst}, v{dst}, {r[0]}, {r[1]}"); r = r[2:]
    if r: out.append(f"v_add_u32 v{dst}, v{dst}, {r[0]}")
    return out
def inter(*ls):
    out = []
    for i in range(max(len(l) for l in ls)):
        for l in ls:
            if i < len(l): out.append(l[i])
    return out
def hashT(): a("s_mul_i32 s6, s6, 0x9E3779B1\ns_add_u32 s6, s6, 0x7F4A7C15")

if OPT["map"] == 0:
    MAP = "s_and_b32 s5, s56, 1\ns_lshl_b32 s5, s5, 2\ns_and_b32 s58, s57, 3\ns_or_b32 s5, s5, s58\ns_lshr_b32 s4, s56, 1\ns_lshl_b32 s4, s4, 3\ns_lshr_b32 s58, s57, 2\ns_or_b32 s4, s4, s58\ns_lshl_b32 s7, s5, 1\ns_add_u32 s7, s7, s4"
elif OPT["map"] == 1:
    MAP = "s_and_b32 s5, s57, 7\ns_lshr_b32 s58, s57, 3\ns_lshl_b32 s4, s56, 2\ns_or_b32 s4, s4, s58\ns_lshl_b32 s7, s4, 1\ns_add_u32 s7, s7, s5"
else:
    MAP = "s_and_b32 s5, s56, 3\ns_lshl_b32 s5, s5, 1\ns_and_b32 s58, s57, 1\ns_or_b32 s5, s5, s58\ns_lshr_b32 s4, s56, 2\ns_lshl_b32 s4, s4, 4\ns_lshr_b32 s58, s57, 1\ns_or_b32 s4, s4, s58\ns_lshl_b32 s7, s5, 2\ns_add_u32 s7, s7, s4"
if not OPT["rot"]: MAP += "\ns_mov_b32 s7, 0"
a("L_start:")
if ST:
    for i in range(1, 12): a(f"s_mov_b64 s[{72+2*i}:{73+2*i}], 0")
stamp(0)
a(f"""
s_load_dwordx16 s[36:51], s[0:1], 0
s_load_dwordx2 s[52:53], s[0:1], 64
s_load_dwordx2 s[54:55], s[0:1], 80
s_cmp_ge_u32 s2, 256
s_cbranch_scc1 L_end
v_lshrrev_b32 v1, 6, v0
v_and_b32 v0, 63, v0
s_and_b32 s56, s2, 7
v_readfirstlane_b32 s3, v1
s_lshr_b32 s57, s2, 3
{MAP}
s_cmp_lt_u32 s3, 4
s_cbranch_scc1 L_compute
""")

vm = Cnt("vmcnt", 63); lg = Cnt("lgkmcnt", 15)
a(f"""
s_sub_u32 s3, s3, 4
v_lshrrev_b32 v1, 3, v0
v_and_b32 v2, 7, v0
v_lshrrev_b32 v3, 4, v0
v_xor_b32 v10, v2, v3
v_lshlrev_b32 v11, 10, v1
v_lshl_add_u32 v4, v10, 4, v11
v_xor_b32 v5, 64, v4
v_add_u32 v5, 8192, v5
v_and_b32 v10, 1, v3
v_lshlrev_b32 v10, 2, v10
v_xor_b32 v10, v10, v2
v_mul_u32_u24 v11, 3072, v1
v_lshl_add_u32 v6, v10, 4, v11
v_add_u32 v7, 24576, v6
s_lshl_b32 s57, s4, 16
s_lshl_b32 s60, s3, 14
s_add_u32 s57, s57, s60
s_lshl_b32 s58, s5, 7
s_mul_i32 s60, s3, {16*3072}
s_add_u32 s58, s58, s60
s_lshl_b32 s60, s3, 11
s_mov_b32 s{SX+2}, 0x200000
s_mov_b32 s{SX+3}, 0x00020000
s_mov_b32 s{SW+2}, 0x180000
s_mov_b32 s{SW+3}, 0x00020000
s_waitcnt lgkmcnt(0)
s_mov_b64 s[{SX}:{SX+1}], s[36:37]
s_mov_b64 s[{SW}:{SW+1}], s[38:39]
""")
def qreg(j): return j * 8192 if j < 6 else LDS_W + (j - 6) * 8192
def dma(t, j, e):
    if t == "X":
        if e == 0: a(f"s_add_u32 s62, s7, {j}\ns_and_b32 s62, s62, 7\ns_lshl_b32 s62, s62, 7\ns_add_u32 s62, s62, s57")
        a(f"s_add_u32 m0, s60, {j*8192 + e*1024}\nbuffer_load_dwordx4 v{4+e}, {S4(SX)}, s62 offen lds")
    else:
        if e == 0: a(f"s_add_u32 s62, s7, {j}\ns_and_b32 s62, s62, 7\ns_mul_i32 s62, s62, {64*3072}\ns_add_u32 s62, s62, s58")
        if t == "W":
            si = e >> 1; so = 1024 * (si + 1)
            a(f"s_add_u32 m0, s60, {LDS_W + (j&3)*16384 + si*8192 + (e&1)*1024 - so}\nbuffer_load_dwordx4 v{6+(e&1)}, {S4(SW)}, s62 offen offset:{so} lds")
        else:
            a(f"s_add_u32 m0, s60, {qreg(j) + e*1024}\nbuffer_load_dwordx4 v{6+e}, {S4(SW)}, s62 offen lds")
SEQ = ["X0 W0 X1 W1 X2 W2 X3 W3 X4 X5 W4 X6 X7 W5 W6 W7",
       "X0 W0 X1 W1 X2 W2 X3 W3 X4 W4 X5 X6 W5 X7 W6 W7",
       "X0 W0 X1 W1 X2 W2 X3 W3 X4 W4 X5 W5 X6 W6 X7 W7",
       "X0 W0 X1 X2 W1 X3 X4 W2 X5 X6 W3 X7 W4 W5 W6 W7"][OPT["seq"]] + " Q0 Q1 Q2 Q3 Q4 Q5 Q6 Q7"
INS = []
for t in SEQ.split():
    for e in range(4 if t[0] == "W" else 2): INS.append((t[0], int(t[1:]), e))
AH = OPT["ahead"]
nb = [0]; pend = []; xdone = [0]; statpub = [False]
def setup_stats():
    a(f"s_load_dword s6, s[54:55], 0")
    srd(SWS, 54, 0x1000000); srd(SWO, 40, 0x80000); srd(SOUT, 52, 0x200000)
    a(f"""
v_lshrrev_b32 v1, 2, v0
s_lshl_b32 s63, s3, 4
v_add_u32 v1, s63, v1
v_lshrrev_b32 v2, 1, v1
v_and_b32 v2, 1, v2
v_and_b32 v3, 3, v0
v_lshl_add_u32 v2, v2, 2, v3
v_lshlrev_b32 v3, 7, v1
v_lshl_add_u32 v8, v2, 4, v3
v_xor_b32 v9, 64, v8
v_lshlrev_b32 v14, 2, v1
v_add_u32 v14, {LDS_NM}, v14
v_mov_b32 v10, 0
v_mov_b32 v11, 0
v_mov_b32 v12, 0
v_mov_b32 v13, 0
s_mov_b32 s64, {ONES}
s_waitcnt lgkmcnt(0)
""")
    hashT()
def dots():
    if not pend: return
    a("s_waitcnt lgkmcnt(0)")
    for r in range(16, 16 + 8*len(pend)*(0 if OPT["exp"] & 4 else 1), 2):
        if OPT["exp"] & 16:
            a(f"v_fmac_f32 v10, s64, v{r}\nv_fmac_f32 v12, v{r}, v{r}\nv_fmac_f32 v11, s64, v{r+1}\nv_fmac_f32 v13, v{r+1}, v{r+1}")
        elif OPT["exp"] & 32:
            for rr in (r, r+1): a(f"v_lshlrev_b32 v40, 16, v{rr}\nv_and_b32 v41, 0xffff0000, v{rr}\nv_pk_add_f32 v[10:11], v[10:11], v[40:41]\nv_pk_fma_f32 v[12:13], v[40:41], v[40:41], v[12:13]")
        elif OPT["exp"] & 64:
            if r % 4 == 0: a(f"v_mfma_f32_16x16x32_bf16 v[40:43], v[{r}:{r+3}], v[{r}:{r+3}], v[40:43]\nv_mfma_f32_16x16x32_bf16 v[44:47], v[{r}:{r+3}], v[48:51], v[44:47]")
        else:
            a(f"v_dot2c_f32_bf16 v10, s64, v{r}\nv_dot2c_f32_bf16 v12, v{r}, v{r}\nv_dot2c_f32_bf16 v11, s64, v{r+1}\nv_dot2c_f32_bf16 v13, v{r+1}, v{r+1}")
    xdone[0] += len(pend); pend.clear()
    if xdone[0] == 8:
        a("""
v_add_f32 v10, v10, v11
v_add_f32 v12, v12, v13
v_add_f32_dpp v10, v10, v10 quad_perm:[1,0,3,2] row_mask:0xf bank_mask:0xf
v_add_f32_dpp v12, v12, v12 quad_perm:[1,0,3,2] row_mask:0xf bank_mask:0xf
v_add_f32_dpp v10, v10, v10 quad_perm:[2,3,0,1] row_mask:0xf bank_mask:0xf
v_add_f32_dpp v12, v12, v12 quad_perm:[2,3,0,1] row_mask:0xf bank_mask:0xf
""")
        lnstats(10, 12, 11, 13, 15)
        a(f"v_cvt_pk_bf16_f32 v11, -v11, -v11\nds_write_b32 v14, v11\nds_write_b32 v14, v13 offset:{LDS_RS-LDS_NM}\ns_waitcnt lgkmcnt(0)")
        statpub[0] = True
def free_after(t, j):
    if t == "W": return 0 if j < 4 else j - 4 + 2
    if t == "Q": return j + 2 if j < 6 else 6
    return 0
def retire(k):
    t, j, e = INS[k]
    if t == "X" and e == 1:
        i = len(pend); pend.append(j)
        if not OPT["exp"] & 4: a(f"ds_read_b128 {V(16+8*i,4)}, v8 offset:{j*8192}\nds_read_b128 {V(20+8*i,4)}, v9 offset:{j*8192}")
    if t == "W" and e == 3:
        if j == 7 and not OPT["sb"]:
            dots(); assert statpub[0]
        a("s_barrier"); nb[0] += 1
        if j == 0: stamp(1)
        if j == 7: stamp(2)
        return True
    return False
N = len(INS)
ret = 0
isev = lambda k: INS[k][0] != "Q" and INS[k][2] == (3 if INS[k][0] == "W" else 1)
for n in range(N):
    did = False
    t, j, e = INS[n]
    while n - ret >= AH or nb[0] < free_after(t, j):
        if isev(ret) or (n - ret == AH and nb[0] >= free_after(t, j)): a(f"s_waitcnt vmcnt({n-1-ret})")
        did = retire(ret) or did; ret += 1
    if t == "Q" and j < 6: assert xdone[0] > j
    dma(t, j, e)
    if n == AH - 1: setup_stats()
    if did and not (OPT["sb"] and nb[0] == 8): dots()
for k in range(ret, N):
    if isev(k):
        a(f"s_waitcnt vmcnt({N-1-k})")
        if retire(k): dots()
dots(); assert statpub[0] and nb[0] == 8
if OPT["sb"]: a("s_barrier")
a(f"""
s_lshr_b32 s65, s5, 2
s_lshl_b32 s63, s4, 1
s_add_u32 s65, s65, s63
s_and_b32 s66, s5, 3
v_lshrrev_b32 v1, 4, v0
v_and_b32 v2, 15, v0
v_lshlrev_b32 v3, 2, v1
v_xor_b32 v2, v2, v3
v_lshlrev_b32 v1, 10, v1
v_lshl_add_u32 v4, v2, 4, v1
s_lshl_b32 s57, s66, 8
s_lshl_b32 s58, s3, 17
s_add_u32 s57, s57, s58
s_lshl_b32 s60, s3, 15
v_bfe_u32 v1, v0, 2, 2
v_lshrrev_b32 v2, 5, v0
v_lshl_add_u32 v2, v2, 2, v1
v_lshlrev_b32 v2, 8, v2
v_xor_b32 v3, s3, v1
v_lshl_add_u32 v2, v3, 6, v2
v_and_b32 v1, 1, v0
v_lshl_add_u32 v2, v1, 5, v2
v_and_b32 v1, 16, v0
v_add_u32 v2, v2, v1
v_and_b32 v1, 2, v0
v_lshl_add_u32 v2, v1, 2, v2
v_lshlrev_b32 v5, 4, v0
v_lshlrev_b32 v3, 2, v0
v_add_u32 v3, 1024, v3
""")
for q in range(4):
    a(f"s_add_u32 s63, s3, {q}\ns_and_b32 s63, s63, 3\ns_lshl_b32 s62, s63, 15\nv_add_u32 v{8+q}, s62, v2\ns_lshl_b32 s62, s63, 13\nv_add_u32 v{72+q}, s62, v5")
a(f"""
s_lshl_b32 s62, s66, 8
s_lshl_b32 s63, s3, 6
s_add_u32 s62, s62, s63
v_lshrrev_b32 v1, 5, v0
v_lshl_add_u32 v7, v1, 5, s62
v_and_b32 v1, 31, v0
s_lshl_b32 s63, s65, 5
v_add_u32 v1, s63, v1
v_lshl_add_u32 v6, v1, 10, v7
v_sub_u32 v16, 2047, v1
s_and_b32 s68, s2, 7
s_lshr_b32 s69, s2, 3
s_mul_i32 s59, s68, 28
s_add_u32 s59, s59, s69
s_cmp_ge_u32 s69, 28
s_cselect_b32 s59, 224, s59
s_waitcnt vmcnt(8)
s_barrier
s_waitcnt vmcnt(0)
s_barrier
""")
stamp(3)
vm.reset()
a(f"""
buffer_load_dwordx4 v[64:67], v6, {S4(SX)}, 0 offen
buffer_load_dwordx4 v[68:71], v6, {S4(SX)}, 0 offen offset:16
global_load_dwordx4 v[24:27], v7, s[44:45]
global_load_dwordx4 v[28:31], v7, s[44:45] offset:16
global_load_dwordx4 v[20:23], v5, s[44:45]
""")
vm.add("x", 5)
if OPT["pt"]:
    a(f"""
s_lshl_b32 s62, s65, 11
s_add_u32 s62, s62, {WS_STATS}
s_lshl_b32 s63, s69, 8
s_add_u32 s63, s63, {WS_CAND}
s_cmp_eq_u32 s3, 0
s_cselect_b32 s62, s62, s63
s_cselect_b32 s63, 15, 1
s_lshl_b32 s68, s59, 11
s_add_u32 s68, s68, {WS_PART}
s_cmp_eq_u32 s3, 2
s_cselect_b32 s62, s68, s62
s_cselect_b32 s63, 15, s63
s_lshl_b32 s68, s65, 12
s_lshl_b32 s70, s66, 10
s_add_u32 s68, s68, s70
s_add_u32 s68, s68, {WS_ROWS}
s_cmp_eq_u32 s3, 3
s_cselect_b32 s62, s68, s62
s_cselect_b32 s63, 7, s63
v_min_u32 v18, s63, v0
v_lshlrev_b32 v18, 7, v18
buffer_load_dword v19, v18, {S4(SWS)}, s62 offen sc1
""")
    vm.add("pt")
a(f"""
s_bitcmp1_b32 s3, 0
s_cselect_b32 s{SFA}, s48, s46
s_cselect_b32 s{SFA+1}, s49, s47
s_mov_b32 s{SFA+2}, {512*3584}
s_mov_b32 s{SFA+3}, 0x00020000
v_mul_u32_u24 v18, 3584, v0
s_barrier
s_barrier
""")
srd(SFB, 50, 1792*1024)
stamp(4)
OS = 8
def guround(r):
    a(f"""
s_lshr_b32 s62, s3, 1
s_add_u32 s62, s62, s59
s_add_u32 s62, s62, {2*r}
s_and_b32 s62, s62, 7
s_lshr_b32 s63, s62, 1
s_lshl_b32 s63, s63, 2
s_and_b32 s70, s62, 1
s_add_u32 s63, s63, s70
s_and_b32 s70, s3, 1
s_lshl_b32 s70, s70, 1
s_add_u32 s63, s63, s70
s_lshl_b32 s63, s63, 10
s_add_u32 m0, s63, {LDS_GU}
s_mul_i32 s62, s62, {64*3584}
s_lshl_b32 s63, s59, 4
s_add_u32 s62, s62, s63
s_cmp_ge_u32 s59, 224
s_cselect_b32 s62, 0x7f000000, s62
buffer_load_dwordx4 v18, {S4(SFA)}, s62 offen lds
""")
    vm.add("gu")
def wdload():
    a(f"""
s_lshl_b32 s62, s59, 13
s_lshl_b32 s63, s3, 11
s_add_u32 s62, s62, s63
s_add_u32 m0, s63, {LDS_WD}
buffer_load_dwordx4 v5, {S4(SFB)}, s62 offen lds
buffer_load_dwordx4 v5, {S4(SFB)}, s62 offen offset:1024 lds
""")
    vm.add("wd", 2)
GU1, GU2 = [int(x) for x in OPT["gu"].split(",")]
if STAGE >= 3:
    for i in range(32):
        if i % 4 == 0:
            a(f"s_add_u32 s62, s4, {i//4}\ns_and_b32 s62, s62, 7" if OPT["worot"] else f"s_mov_b32 s62, {i//4}")
            a(f"s_mul_i32 s{OS+i//4}, s62, {OR_}\ns_lshl_b32 s62, s62, 14\ns_add_u32 s62, s62, s57")
        else: a("s_add_u32 s62, s62, 4096")
        a(f"s_add_u32 m0, s60, {i*1024}")
        a(f"buffer_load_dwordx4 v4, {S4(SWO)}, s62 offen lds"); vm.add("wo")
    wdload()
    for r in range(GU1): guround(r)
    vm.wait("x")
    for j in range(8):
        a(f"v_lshlrev_b32 v{80+2*j}, 16, v{64+j}\nv_and_b32 v{81+2*j}, 0xffff0000, v{64+j}")
    a("v_mov_b32 v17, 0")
    for j in range(4): a(f"v_dot2c_f32_bf16 v17, s64, v{20+j}")
    for r in (8, 4, 2, 1): a(f"v_add_f32_dpp v17, v17, v17 row_ror:{r} row_mask:0xf bank_mask:0xf")
    a(f"""
v_readlane_b32 s67, v17, 0
v_readlane_b32 s68, v17, 16
v_readlane_b32 s69, v17, 32
v_readlane_b32 s70, v17, 48
v_mov_b32 v17, s67
v_add_f32 v17, s68, v17
v_add_f32 v17, s69, v17
v_add_f32 v17, s70, v17
s_lshl_b32 s62, s3, 10
s_add_u32 s62, s62, {LDS_PRE}
v_add_u32 v13, s62, v5
v_and_b32 v14, 31, v0
v_lshrrev_b32 v15, 5, v0
v_lshlrev_b32 v14, 4, v14
v_lshl_add_u32 v14, v15, 10, v14
v_mov_b32 v20, 0
v_mov_b32 v21, 0
v_mov_b32 v22, 0
v_mov_b32 v23, s6
s_lshl_b32 s57, s65, 2
s_add_u32 s57, s57, s3
s_mul_i32 s57, s57, {8*OR_}
s_add_u32 s57, s57, {WS_O}
s_lshl_b32 s67, s6, 3
""")
    for i in range(8): a(f"s_add_u32 s{OS+i}, s{OS+i}, s57")
    WR = lambda q, s_: 128 + 32*q + 4*s_
    vm.wait("wd")
    stamp(5)
    a("s_barrier")
    stamp(6)
    for q in range(4):
        for s_ in range(8):
            for e in range(2):
                a(f"ds_read_b64_tr_b16 {V(WR(q,s_)+2*e,2)}, v{8+q} offset:{s_*4096+e*2048}")
    def oloads():
        for i in range(8):
            a(f"buffer_load_dwordx4 {V(96+4*i,4)}, v5, {S4(SWS)}, s{OS+i} offen sc1")
            a(f"buffer_load_dword v{32+i}, v3, {S4(SWS)}, s{OS+i} offen sc1")
    def ocheck():
        for l in inter(sum3(40, range(96, 112), "s67"), sum3(41, range(112, 128)), sum3(42, range(32, 40))): a(l)
        a("v_add_u32 v40, v40, v41\nv_cmp_ne_u32 vcc, v40, v42")
    oloads()
    a("s_waitcnt lgkmcnt(0)\ns_barrier\ns_waitcnt vmcnt(0)")
    ocheck()
    a("s_cbranch_vccnz L_oretry\nL_ook:")
    sv = a; a = tail
    a("L_oretry:")
    poll(oloads, ocheck)
    a("s_branch L_ook")
    a = sv
    stamp(7)
    vm.reset()
    for s_ in range(8):
        a(f"ds_write_b128 v72, {V(96+4*s_,4)} offset:{LDS_OX+s_*1024}")
        if s_ >= 4: mfma32(80, WR(0, s_ - 4), 96 + 4*(s_-4), 80)
    OBUF = {1: 32, 2: 96, 3: 32}
    a("s_waitcnt lgkmcnt(0)\ns_barrier")
    lg.reset()
    def rdo(q, s_):
        a(f"ds_read_b128 {V(OBUF[q]+4*s_,4)}, v{72+q} offset:{LDS_OX+s_*1024}"); lg.add((q, s_))
    for s_ in range(8): rdo(1, s_)
    for s_ in range(4, 8):
        mfma32(80, WR(0, s_), 96 + 4*s_, 80)
        rdo(2, s_ - 4)
        if s_ - 4 < GU2: guround(GU1 + s_ - 4)
    for q in (1, 2, 3):
        for s_ in range(8):
            lg.wait((q, s_))
            mfma32(80, WR(q, s_), OBUF[q] + 4*s_, 80)
            if q == 1 and s_ < 4: rdo(2, s_ + 4)
            if q == 1 and s_ >= 4: rdo(3, s_ - 4)
            if q == 2 and s_ < 4: rdo(3, s_ + 4)
if STAGE >= 3:
    for j in range(8): a(f"v_cvt_pk_bf16_f32 v{64+j}, v{80+2*j}, v{81+2*j}")
    for j in range(8):
        a(f"v_dot2c_f32_bf16 v20, s64, v{64+j}\nv_dot2c_f32_bf16 v21, v{64+j}, v{64+j}\nv_dot2c_f32_bf16 v22, v{24+j}, v{64+j}")
    a(f"ds_write_b128 v13, v[20:23]\ns_waitcnt lgkmcnt(0)\ns_barrier")
    stamp(8)
    a(f"""
s_lshl_b32 s57, s65, 11
s_add_u32 s57, s57, {WS_STATS}
s_cmp_lg_u32 s3, 0
s_cbranch_scc1 L_nopub
ds_read_b128 v[32:35], v13 offset:1024
ds_read_b128 v[36:39], v13 offset:2048
ds_read_b128 v[40:43], v13 offset:3072
s_lshl_b32 s58, s66, 9
s_add_u32 s58, s58, s57
s_waitcnt lgkmcnt(1)
v_pk_add_f32 v[32:33], v[32:33], v[36:37]
v_add_f32 v34, v34, v38
s_waitcnt lgkmcnt(0)
v_pk_add_f32 v[20:21], v[20:21], v[40:41]
v_add_f32 v22, v22, v42
v_pk_add_f32 v[20:21], v[20:21], v[32:33]
v_add_f32 v22, v22, v34
v_mov_b32 v32, v20
v_mov_b32 v33, v21
v_mov_b32 v34, v22
v_permlane32_swap_b32 v20, v32
v_permlane32_swap_b32 v21, v33
v_permlane32_swap_b32 v22, v34
v_pk_add_f32 v[20:21], v[20:21], v[32:33]
v_add_f32 v22, v22, v34
s_mov_b64 exec, 0xffffffff
buffer_store_dwordx4 v[20:23], v5, {S4(SWS)}, s58 offen sc1
s_mov_b64 exec, -1
L_nopub:
""")
    for r in range(GU1 + GU2, 4): guround(r)
    for j in range(8):
        a(f"v_lshlrev_b32 v{80+2*j}, 16, v{64+j}\nv_and_b32 v{81+2*j}, 0xffff0000, v{64+j}")
    for l in sum3(57, range(64, 72), "s6"): a(l)
    a(f"""
v_lshlrev_b32 v12, 2, v7
s_lshl_b32 s60, s65, 12
s_add_u32 s60, s60, {WS_ROWS}
s_lshl_b32 s61, s65, {CSH}
s_add_u32 s61, s61, {WS_CAND}
s_or_b32 s62, s3, s66
""")
    def sloads():
        a(f"buffer_load_dwordx4 v[32:35], v14, {S4(SWS)}, s57 offen sc1\nbuffer_load_dwordx4 v[36:39], v14, {S4(SWS)}, s57 offen offset:512 sc1")
    def scheck():
        a("v_bitop3_b32 v35, v35, v39, s6 bitop3:0x7e\nv_cmp_ne_u32 vcc, 0, v35")
    poll(sloads, scheck)
    stamp(9)
    a("""
v_pk_add_f32 v[20:21], v[32:33], v[36:37]
v_add_f32 v22, v34, v38
v_mov_b32 v32, v20
v_mov_b32 v33, v21
v_mov_b32 v34, v22
v_permlane32_swap_b32 v20, v32
v_permlane32_swap_b32 v21, v33
v_permlane32_swap_b32 v22, v34
v_pk_add_f32 v[20:21], v[20:21], v[32:33]
v_add_f32 v22, v22, v34
""")
    lnstats(20, 21, 26, 28, 25)
    a(f"""
v_fma_f32 v22, -v26, v17, v22
v_mul_f32 v22, v22, v28
v_mul_f32 v30, v26, v28
v_ashrrev_i32 v25, 31, v22
v_or_b32 v25, 0x80000000, v25
v_xor_b32 v22, v22, v25
v_and_or_b32 v22, v22, s69, v16
""".replace("v_and_or_b32 v22, v22, s69, v16", "v_and_b32 v22, 0xfffff800, v22\nv_or_b32 v22, v22, v16"))
    dp = [f"v_max_u32_dpp v22, v22, v22 row_ror:{r} row_mask:0xf bank_mask:0xf" for r in (8, 4, 2, 1)]
    for j in range(8):
        a(f"v_pk_fma_f32 {V(32+2*j,2)}, {V(80+2*j,2)}, v[28:29], v[30:31] op_sel_hi:[1,0,0] neg_lo:[0,0,1] neg_hi:[0,0,1]")
        if j % 2 == 1: a(dp[j // 2])
    a(f"v_cvt_pk_bf16_f32 v48, v32, v33")
    a("v_readlane_b32 s67, v22, 0\nv_readlane_b32 s68, v22, 16")
    a(f"""
v_cvt_pk_bf16_f32 v49, v34, v35
s_max_u32 s67, s67, s68
s_cmp_lg_u32 s62, 0
s_cbranch_scc1 L_nocand
v_mov_b32 v22, s67
s_mov_b64 exec, 1
buffer_store_dwordx2 v[22:23], off, {S4(SWS)}, s61 sc1
s_mov_b64 exec, -1
L_nocand:
s_andn2_b32 s68, 31, s67
s_mov_b32 s58, 1
s_mov_b32 s59, 1
s_lshl_b64 s[58:59], s[58:59], s68
""")
    for j in range(2, 8): a(f"v_cvt_pk_bf16_f32 v{48+j}, v{32+2*j}, v{33+2*j}")
    for l in sum3(56, range(48, 56), "s6"): a(l)
    a(f"""
s_mov_b64 exec, s[58:59]
buffer_store_dwordx4 v[48:51], v12, {S4(SWS)}, s60 offen sc1
buffer_store_dwordx4 v[52:55], v12, {S4(SWS)}, s60 offen offset:16 sc1
buffer_store_dwordx2 v[56:57], v12, {S4(SWS)}, s60 offen offset:32 sc1
buffer_store_dwordx4 v[64:67], v12, {S4(SWS)}, s60 offen offset:48 sc1
buffer_store_dwordx4 v[68:71], v12, {S4(SWS)}, s60 offen offset:64 sc1
s_mov_b64 exec, -1
s_barrier
""")
    stamp(10)
    for j in range(8):
        a(f"v_lshlrev_b32 v{32+2*j}, 16, v{48+j}\nv_and_b32 v{33+2*j}, 0xffff0000, v{48+j}")
    for j in range(8): a(f"v_pk_add_f32 {V(32+2*j,2)}, {V(32+2*j,2)}, {V(80+2*j,2)}")
    for j in range(8): a(f"v_cvt_pk_bf16_f32 v{56+j}, v{32+2*j}, v{33+2*j}")
    a(f"""
v_mov_b32 v24, {LDS_KEY}
v_and_b32 v25, 31, v0
v_mul_u32_u24 v25, 272, v25
v_and_b32 v26, 0xff, v7
v_add_u32 v25, v25, v26
ds_write_b128 v25, v[56:59] offset:{LDS_OT}
ds_write_b128 v25, v[60:63] offset:{LDS_OT+16}
v_lshrrev_b32 v25, 4, v0
s_lshl_b32 s62, s3, 3
v_add_u32 v25, s62, v25
v_and_b32 v26, 15, v0
v_lshlrev_b32 v26, 4, v26
v_mul_u32_u24 v27, 272, v25
v_add_u32 v27, v27, v26
s_lshl_b32 s62, s65, 5
v_add_u32 v25, s62, v25
v_lshl_add_u32 v26, v25, 10, v26
v_sub_u32 v25, 2047, v25
v_subrev_u32 v28, 4, v25
s_lshl_b32 s62, s66, 8
s_add_u32 s63, s62, 4096
s_waitcnt lgkmcnt(0)
s_barrier
ds_read_b32 v24, v24
ds_read_b128 v[56:59], v27 offset:{LDS_OT}
ds_read_b128 v[60:63], v27 offset:{LDS_OT+4*272}
s_waitcnt lgkmcnt(0)
v_and_b32 v24, 0x7ff, v24
v_cmp_ne_u32 vcc, v24, v25
v_cmp_ne_u32 s[58:59], v24, v28
s_mov_b64 exec, vcc
buffer_store_dwordx4 v[56:59], v26, {S4(SOUT)}, s62 offen
s_mov_b64 exec, s[58:59]
buffer_store_dwordx4 v[60:63], v26, {S4(SOUT)}, s63 offen
s_mov_b64 exec, -1
""")
    stamp(11)
if ST:
    a("s_cmp_lg_u32 s3, 0\ns_cbranch_scc1 L_end")
    dump_stamps(1)
a("s_endpgm")
vm.reset(); lg.reset()
INC[0] = OPT["fine"] != 0
MD, MO, XR, WS_, AK, AV, AQ, RSV, KF, VF = 64, 80, 128, 32, 64, 80, 96, 96, 112, 120
HB = lambda p: 128 + 24 * (3 - p)
HC = {3: 4, 2: 6, 1: 8, 0: 20}
VCS = 22
a(f"""
L_compute:
s_and_b32 s56, s3, 1
s_lshr_b32 s57, s3, 1
""")
if OPT["cpf"] == 1:
    a(f"""
s_getpc_b64 s[62:63]
L_pc:
s_sub_u32 s62, s62, L_pc-L_start
s_subb_u32 s63, s63, 0
s_lshr_b32 s60, s2, 3
s_lshl_b32 s60, s60, 2
s_add_u32 s60, s60, s3
s_lshl_b32 s60, s60, 8
v_and_b32 v31, 1, v0
v_lshl_add_u32 v31, v31, 7, s60
v_min_u32 v31, L_cold-L_start, v31
global_load_dword v112, v31, s[62:63]
""")
a(f"""
v_lshlrev_b32 v1, 4, v0
v_lshrrev_b32 v28, 5, v0
v_and_b32 v29, 15, v0
v_lshl_add_u32 v29, v28, 4, v29
v_lshlrev_b32 v29, 4, v29
v_add_u32 v3, 1024, v29
v_bfe_u32 v30, v0, 4, 1
v_mul_u32_u24 v30, {64*KVR}, v30
v_add_u32 v2, v30, v3
v_lshlrev_b32 v{VCS}, 2, v0
v_add_u32 v{VCS}, 1024, v{VCS}
s_lshl_b32 s58, s5, 1
s_add_u32 s58, s58, s57
s_lshl_b32 s58, s58, 7
s_lshl_b32 s60, s4, 1
s_add_u32 s58, s58, s60
s_add_u32 s58, s58, s56
s_mul_i32 s58, s58, {KVR}
s_add_u32 s58, s58, {WS_KV}
s_lshl_b32 s59, s4, 4
s_add_u32 s59, s59, s5
s_lshl_b32 s59, s59, 2
s_add_u32 s59, s59, s3
s_mul_i32 s59, s59, {OR_}
s_add_u32 s59, s59, {WS_O}
s_add_u32 s61, s58, {64*KVR}
s_add_u32 s64, s59, {32*OR_}
s_and_b32 s66, s2, 7
s_lshr_b32 s67, s2, 3
s_mul_i32 s65, s66, 28
s_add_u32 s65, s65, s67
s_lshl_b32 s66, s66, 2
s_add_u32 s66, s66, s67
s_add_u32 s66, s66, {224-28}
s_cmp_ge_u32 s67, 28
s_cselect_b32 s65, s66, s65
s_waitcnt lgkmcnt(0)
s_load_dword s6, s[54:55], 0
""")
srd(SWS, 54, 0x1000000)
srd(SOUT, 52, 0x200000)
if OPT["kvpt"]:
    a(f"""
v_and_b32 v29, 31, v0
v_min_u32 v29, 17, v29
v_lshlrev_b32 v29, 7, v29
v_mul_u32_u24 v30, {64*KVR}, v28
v_add_u32 v29, v29, v30
buffer_load_dword v113, v29, {S4(SWS)}, s58 offen sc1
""")
a(f"""
v_and_b32 v29, 31, v0
s_lshl_b32 s60, s56, 5
v_add_u32 v29, s60, v29
v_bfe_u32 v30, v29, 1, 3
v_xor_b32 v30, v30, v28
v_lshlrev_b32 v31, 7, v29
v_lshl_add_u32 v4, v30, 4, v31
v_xor_b32 v5, 32, v4
v_xor_b32 v6, 64, v4
v_xor_b32 v7, 96, v4
v_lshlrev_b32 v14, 2, v29
v_add_u32 v14, {LDS_NM}, v14
v_bfe_u32 v29, v0, 2, 2
v_lshl_add_u32 v30, v28, 3, v29
v_lshlrev_b32 v30, 7, v30
v_lshrrev_b32 v29, 1, v29
v_xor_b32 v29, s57, v29
v_lshl_add_u32 v30, v29, 6, v30
v_and_b32 v29, 16, v0
v_lshl_add_u32 v30, v29, 1, v30
v_and_b32 v29, 3, v0
v_lshl_add_u32 v9, v29, 3, v30
v_add_u32 v8, {LDS_W}, v9
v_mov_b32 v10, 0
v_mov_b32 v11, 0
v_mov_b32 v12, 0
v_mov_b32 v13, 0
s_mov_b32 s22, {ONES}
s_mov_b32 s23, {ONES}
v_and_b32 v29, 31, v0
v_lshlrev_b32 v30, 2, v28
v_sub_u32 v29, v29, v30
s_lshl_b32 s60, s3, 3
v_subrev_u32 v29, s60, v29
v_mov_b32 v30, 0xf149f2ca
""")
for j in range(4):
    a(f"v_cmp_le_i32 vcc, {j}, v29\nv_cndmask_b32_e64 v{64+j}, v30, 0, vcc\nv_cndmask_b32 v{68+j}, 0, v30, vcc")
a(f"""
s_lshl_b32 s60, s3, 10
s_add_u32 s60, s60, {LDS_MK}
v_add_u32 v29, s60, v1
ds_write_b128 v29, v[64:67]
ds_write_b128 v29, v[68:71] offset:4096
s_lshl_b32 s60, s57, 2
s_add_u32 s60, s60, s56
s_lshl_b32 s69, s60, 10
s_lshl_b32 s68, s60, 11
s_add_u32 s68, s68, {LDS_KX}
s_sub_u32 s69, {LDS_QX-LDS_KX}, s69
v_add_u32 v23, s68, v1
v_lshrrev_b32 v16, 1, v0
v_xor_b32 v16, v16, v28
v_and_b32 v16, 1, v16
v_bfe_u32 v18, v0, 2, 1
v_lshl_add_u32 v16, v16, 1, v18
v_mov_b32 v18, 0x3f003f00
v_cmp_eq_u32 vcc, 0, v16
v_cndmask_b32 v28, 0, v18, vcc
v_cndmask_b32 v29, 0, v18, vcc
v_cmp_eq_u32 vcc, 1, v16
v_cndmask_b32 v30, 0, v18, vcc
v_cndmask_b32 v31, 0, v18, vcc
v_and_b32 v16, 1, v0
v_mul_u32_u24 v16, 0xaaaa, v16
s_lshl_b32 s60, s5, 2
s_add_u32 s60, s60, s3
s_lshl_b32 s60, s60, 5
s_add_u32 s60, s60, s4
s_mul_i32 s60, s60, {2*KVR}
s_add_u32 s60, s60, {WS_KV - 8*KVR}
s_mov_b32 s100, 0xffff
s_mov_b32 s101, 0xffff
s_waitcnt lgkmcnt(0)
v_add_u32 v15, 0x4444, v16
""")
hashT()
a("s_lshl_b32 s62, s6, 1\ns_add_u32 s63, s6, %d" % ((8 * ONES) & 0xffffffff))
for p in range(4):
    a(f"s_add_u32 s{96+p}, s60, {p*2*KVR}\ns_cmp_ge_u32 s4, {4-p}\ns_cselect_b32 s{96+p}, s{96+p}, 0x7f000000\ns_cselect_b32 s{12+p}, s62, 0")
for r in (17, 19, 20, 21, 25, 26, 27): a(f"v_mov_b32 v{r}, 0")

def smf(B): a(f"v_smfmac_f32_16x16x64_bf16 v[10:13], v[28:31], {V(B,8)}, v15")
def rdKV(i):
    c, ks = i >> 2, i & 3
    a(f"ds_read_b128 {V(XR+4*i,4)}, v{4+ks} offset:{c*8192}"); lg.add(i)
    for si in range(0 if OPT["exp"] & 2 else 2):
        for e in range(2):
            a(f"ds_read_b64_tr_b16 {V(WS_+8*ks+4*si+2*e,2)}, v8 offset:{(c&3)*16384+si*8192+ks*2048+e*512}"); lg.add(i)
mK = lambda i: mfma32(AK, WS_+8*(i&3), XR+4*i, None if i == 0 else AK)
mV = lambda i: mfma32(AV, XR+4*i, WS_+8*(i&3)+4, None if i == 0 else AV)
a("s_barrier")
stamp(1); cstamp(7)
rdKV(0); rdKV(1); rdKV(2)
for i in range(30):
    lg.wait(i)
    if i % 4 == 3:
        a("s_barrier")
        if i == 27: stamp(2); cstamp(8)
        if i in (7, 11, 15, 19): stamp(7 + (i - 7) // 4, 2)
        rdKV(i + 1); rdKV(i + 2); rdKV(i + 3)
    if i % 4 == 0: rdKV(i + 3)
    if not OPT["exp"] & 1: mK(i); mV(i)
    if not OPT["exp"] & 8: smf(WS_+8*(i&3))
    if i == 24: a('s_waitcnt vmcnt(0)')
    if i == 28:
        a(f"v_bfe_u32 v4, v0, 4, 1\nv_lshl_add_u32 v4, v4, 12, v3\nv_add_u32 v4, s68, v4")
        a(f"v_lshrrev_b32 v5, 5, v0\ns_lshl_b32 s60, s56, 7\ns_add_u32 s60, s60, {LDS_RS}\nv_lshl_add_u32 v5, v5, 4, s60")
if OPT["sb"]: a("s_barrier")
a(f"ds_read_b32 v24, v14\nds_read_b32 v14, v14 offset:{LDS_RS-LDS_NM}"); lg.add("st", 2)
for q in range(4): a(f"ds_read_b128 {V(RSV+4*q,4)}, v5 offset:{q*32}"); lg.add("st")
lg.wait(31)
smf(WS_+16); smf(WS_+24)
mK(30); mV(30)
a(f"""
v_add_f32 v10, v10, v11
v_add_f32 v12, v12, v13
v_and_b32 v11, 0xffff0000, v10
v_and_b32 v13, 0xffff0000, v12
v_sub_f32 v10, v10, v11
v_sub_f32 v12, v12, v13
""")
mK(31)
a("v_cvt_pk_bf16_f32 v16, v11, v10\nv_cvt_pk_bf16_f32 v18, v13, v12\ns_waitcnt lgkmcnt(0)")
mfma32(AK, 16, 24, AK)
mV(31)
mfma32(AV, 24, 18, AV)
a("v_mov_b32 v10, 0\nv_mov_b32 v11, 0\nv_mov_b32 v12, 0\nv_mov_b32 v13, 0\nv_mov_b32 v6, s63")
for j in range(8): a(f"v_pk_mul_f32 {V(AK+2*j,2)}, {V(AK+2*j,2)}, v[14:15] op_sel_hi:[1,0]")
for j in range(8):
    a(f"v_cvt_pk_bf16_f32 v{KF+j}, v{AK+2*j}, v{AK+2*j+1}")
    if j == 3: a(f"buffer_store_dwordx4 {V(KF,4)}, v1, {S4(SWS)}, s58 offen sc1")
a(f"buffer_store_dwordx4 {V(KF+4,4)}, v1, {S4(SWS)}, s61 offen sc1")
for h in range(2):
    for j in range(4*h, 4*h+4): a(f"v_pk_mul_f32 {V(AV+2*j,2)}, {V(AV+2*j,2)}, {V(RSV+2*j,2)}")
    for j in range(4*h, 4*h+4): a(f"v_cvt_pk_bf16_f32 v{VF+j}, v{AV+2*j}, v{AV+2*j+1}")
    a(f"buffer_store_dwordx4 {V(VF+4*h,4)}, v2, {S4(SWS)}, s58 offen offset:{512*h} sc1")
for l in sum3(5, range(VF, VF+8), "s6"): a(l)
a("v_permlane16_swap_b32 v5, v6")
for l in inter(sum3(5, range(KF, KF+4), "v5"), sum3(6, range(KF+4, KF+8), "v6")): a(l)
a(f"buffer_store_dword v5, v{VCS}, {S4(SWS)}, s58 offen offset:1024 sc1\nbuffer_store_dword v6, v{VCS}, {S4(SWS)}, s61 offen offset:1024 sc1")
vm.add("kv", 6)
stamp(3)
lg.reset()
OK_, QF, OV, OA, OB, P, S0, S1 = 96, 104, 112, 32, 48, 24, 224, 240
HP = dict(zip((3, 2, 1, 0), OPT["hp"].split(",")))
def rdQ(i):
    j, ks = i >> 2, i & 3
    va, off = (9, j * 8192) if j < 6 else (8, (j - 6) * 8192)
    for e in range(2):
        a(f"ds_read_b64_tr_b16 {V(WS_+4*(i&7)+2*e,2)}, v{va} offset:{off+ks*2048+e*512}"); lg.add(i)
def halo(p, track=True):
    for e in range(2):
        a(f"buffer_load_dwordx4 {V(HB(p)+4*e,4)}, v1, {S4(SWS)}, s{96+p} offen offset:{e*KVR} sc1")
    a("s_mov_b64 exec, s[100:101]")
    for e in range(4):
        a(f"buffer_load_dwordx4 {V(HB(p)+8+4*e,4)}, v3, {S4(SWS)}, s{96+p} offen offset:{(e>>1)*KVR+(e&1)*512} sc1")
    a("s_mov_b64 exec, -1")
    for e in range(2):
        a(f"buffer_load_dword v{HC[p]+e}, v{VCS}, {S4(SWS)}, s{96+p} offen offset:{1024+e*KVR} sc1")
    if track: vm.add(p, 8)
def hcheck_l(p):
    k = HB(p)
    return inter(sum3(16, range(k, k+12), f"s{12+p}"), sum3(17, range(k+12, k+23))) + [
        f"v_add_u32 v18, v{HC[p]}, v{HC[p]+1}", f"v_add3_u32 v16, v16, v17, v{k+23}", "v_cmp_ne_u32 vcc, v16, v18"]
def hcheck(p):
    for l in hcheck_l(p): a(l)
a("s_barrier")
for i in range(6): rdQ(i)
a(f"ds_write_b128 v23, {V(KF,4)}\nds_write_b128 v23, {V(KF+4,4)} offset:4096"); lg.add("x", 2)
fill = {i: [] for i in range(32)}
fill[0] += [f"ds_write_b128 v4, {V(VF,4)}", f"ds_write_b128 v4, {V(VF+4,4)} offset:512", "v_add_u32 v23, s69, v23", f"v_add_u32 v2, {LDS_MK}, v1"]
for j in range(8): fill[2 + j].append(f"ds_read_b128 {V(MD+4*j,4)}, v2 offset:{j*1024}")
for j in range(8): fill[1 + j // 2].append(f"v_mov_b64 {V(OV+2*j,2)}, s[22:23]")
onesdone = {}
for p in (3, 2, 1, 0):
    st = (HB(p) + 24 - XR) // 4
    fill[st].append(f"s_cmp_ge_u32 s4, {4-p}\ns_cselect_b64 s[20:21], s[22:23], 0")
    for j in range(8): fill[st + j // 3].append(f"v_mov_b64 {V(HB(p)+8+2*j,2)}, s[20:21]")
    onesdone[p] = st + 2
for i in range(32):
    if i == OPT["bq1"]: a("s_barrier")
    lg.wait(i)
    mfma32(AQ, WS_+4*(i&7), XR+4*i, None if i == 0 else AQ)
    if i & 1:
        if i == 31: pass
        elif i == 29:
            smf(WS_+4*((i-1)&7)); lg.wait(31); smf(WS_+4*((i+1)&7))
        else: smf(WS_+4*((i-1)&7))
        for n in (i + 5, i + 6):
            if n < 32:
                assert n < 16 or i >= OPT["bq1"]
                rdQ(n)
    for l in fill[i]:
        a(l)
        if l.startswith("ds_"): lg.add("x")
    for p in (3, 2, 1, 0):
        if HP[p].isdigit() and int(HP[p]) >= 3 and int(HP[p]) == i:
            assert p >= 2 and i >= onesdone[p] and STAGE >= 2
            halo(p)
    if i == 30:
        a("v_pk_add_f32 v[10:11], v[10:11], v[12:13]\nv_mul_f32 v14, 0x3eb8aa3b, v14\nv_add_f32 v10, v10, v11\nv_and_b32 v11, 0xffff0000, v10\nv_sub_f32 v10, v10, v11\nv_cvt_pk_bf16_f32 v16, v11, v10")
mfma32(AQ, 16, 24, AQ)
a(f"""
s_lshl_b32 s60, s3, 12
s_add_u32 s60, s60, {LDS_KX}
v_add_u32 v10, s60, v1
v_add_u32 v11, s60, v3
s_lshl_b32 s60, s3, 11
s_add_u32 s60, s60, {LDS_QX}
v_add_u32 v12, s60, v1
""")
def hat(pos):
    if STAGE >= 2:
        for p in (3, 2, 1, 0):
            if HP[p] == pos: halo(p)
hat("E")
for j in range(8): a(f"v_pk_mul_f32 {V(AQ+2*j,2)}, {V(AQ+2*j,2)}, v[14:15] op_sel_hi:[1,0]")
for j in range(8):
    a(f"v_cvt_pk_bf16_f32 v{P+j}, v{AQ+2*j}, v{AQ+2*j+1}")
    if j == 3: a(f"ds_write_b128 v23, {V(P,4)}")
a(f"""
ds_write_b128 v23, {V(P+4,4)} offset:2048
ds_read_b128 {V(OK_,4)}, v10
ds_read_b128 {V(OK_+4,4)}, v10 offset:2048
s_mov_b64 exec, s[100:101]
ds_read_b128 {V(OV,4)}, v11
ds_read_b128 {V(OV+4,4)}, v11 offset:512
ds_read_b128 {V(OV+8,4)}, v11 offset:2048
ds_read_b128 {V(OV+12,4)}, v11 offset:2560
s_mov_b64 exec, -1
s_waitcnt lgkmcnt(6)
s_barrier
ds_read_b128 {V(QF,4)}, v12
ds_read_b128 {V(QF+4,4)}, v12 offset:1024
""")
stamp(4)
hat("X")
BHPOS = max([int(x) for x in HP.values() if x.isdigit() and int(x) < 3] + [-1])
if STAGE == 1:
    a(f"s_waitcnt lgkmcnt(0)\ns_barrier\nbuffer_store_dwordx4 {V(QF,4)}, v1, {S4(SWS)}, s59 offen\nbuffer_store_dwordx4 {V(QF+4,4)}, v1, {S4(SWS)}, s64 offen")
if STAGE >= 2:
    blocks = [(0, OK_, OV, MD, None), (1, OK_+4, OV+8, MD, None), (1, OK_, OV, None, None)]
    for p in (3, 2, 1, 0):
        first = True
        for e in (1, 0):
            for qt in (0, 1):
                i = 2 * p + e
                if qt == 1 and i == 0: continue
                m = MO if (i == qt) else None
                blocks.append((qt, HB(p)+4*e, HB(p)+8+8*e, m, p if first else None)); first = False
    assert len(blocks) == 18
    Sb = (S0, S1); Oacc = (OA, OB); started = [False, False]
    def QK(i):
        qt, k, v, m, chk = blocks[i]
        global a
        if chk is not None:
            vm.wait(chk)
            hcheck(chk)
            a(f"s_cbranch_vccnz L_hretry{chk}\nL_hok{chk}:")
            sv = a; a = tail
            a(f"L_hretry{chk}:")
            poll(lambda: halo(chk, False), lambda: hcheck(chk))
            stamp(10, 1)
            a(f"s_branch L_hok{chk}")
            a = sv
            if chk == 0: cstamp(10)
            if chk == 3: stamp(5); cstamp(9)
            else: stamp(9 - chk, 1)
        mfma32(Sb[i & 1], k, QF+4*qt, m)
    def PV(i, e):
        qt, k, v, m, chk = blocks[i]
        mfma32(Oacc[qt], v+4*e, P+4*e, Oacc[qt] if started[qt] else None); started[qt] = True
    a("s_waitcnt lgkmcnt(1)")
    QK(0)
    a("s_waitcnt lgkmcnt(0)")
    if BHPOS < 0: a("s_barrier")
    for i in range(18):
        cur = Sb[i & 1]
        ex = lambda r: [a(f"v_exp_f32 v{cur+j}, v{cur+j}") for j in r]
        cv = lambda r: [a(f"v_cvt_pk_bf16_f32 v{P+j}, v{cur+2*j}, v{cur+2*j+1}") for j in r]
        if i < 3:
            hat(str(i))
            if i == BHPOS: a("s_barrier")
        if i + 1 < 18: QK(i + 1)
        ex(range(0, 4))
        if i > 0: PV(i - 1, 1)
        ex(range(4, 9)); cv(range(0, 4)); ex(range(9, 11))
        PV(i, 0)
        ex(range(11, 16)); cv(range(4, 8))
    PV(17, 1)
    a(f"""
s_mov_b32 s60, 0x2b800000
v_subrev_u32 v4, s60, v{OB+8}
v_subrev_u32 v5, s60, v{OA+8}
v_max_u32 v4, v4, v5
v_cmp_lt_u32 vcc, {0x28000000 if not OPT["force"] else 0}, v4
""")
    if OPT["slow"]: a("s_cbranch_vccnz L_slow")
    a(f"L_attn_norm:\nv_rcp_f32 v6, v{OB+8}\nv_rcp_f32 v8, v{OA+8}")
    for (acc, rc, so) in ((OB, 6, 64), (OA, 8, 59)):
        for j in range(4): a(f"v_pk_mul_f32 {V(acc+2*j,2)}, {V(acc+2*j,2)}, v[{rc}:{rc+1}] op_sel_hi:[1,0]")
        for j in range(4): a(f"v_cvt_pk_bf16_f32 v{acc+8+j}, v{acc+2*j}, v{acc+2*j+1}")
        a(f"buffer_store_dwordx4 {V(acc+8,4)}, v1, {S4(SWS)}, s{so} offen sc1")
        for l in sum3(acc+12, range(acc+8, acc+12), "s6"): a(l)
        a(f"buffer_store_dword v{acc+12}, v{VCS}, {S4(SWS)}, s{so} offen sc1")
    stamp(6)
    sv = a; a = cold
    a("L_slow:\ns_nop 15\nv_mov_b32 v4, 0xff800000\nv_mov_b32 v5, 0xff800000")
    for ps in range(2):
        started = [False, False]
        for i in range(18):
            qt, k, v, m, chk = blocks[i]
            if chk is not None: a(f"s_cmp_lt_u32 s4, {4-chk}\ns_cbranch_scc1 L_slow_e{ps}")
            mfma32(S0, k, QF+4*qt, m)
            if ps == 0:
                for j in range(0, 16, 2): a(f"v_max3_f32 v{4+qt}, v{4+qt}, v{S0+j}, v{S0+j+1}")
            else:
                for j in range(16): a(f"v_sub_f32 v{S0+j}, v{S0+j}, v{4+qt}\nv_exp_f32 v{S0+j}, v{S0+j}")
                for j in range(8): a(f"v_cvt_pk_bf16_f32 v{P+j}, v{S0+2*j}, v{S0+2*j+1}")
                PV(i, 0); PV(i, 1)
        a(f"L_slow_e{ps}:\ns_nop 15")
        if ps == 0:
            a("v_mov_b32 v6, v4\nv_mov_b32 v7, v5\ns_nop 1\nv_permlane32_swap_b32 v4, v6\nv_permlane32_swap_b32 v5, v7\ns_nop 1\nv_max_f32 v4, v4, v6\nv_max_f32 v5, v5, v7")
    a("s_branch L_attn_norm")
    a = sv
if STAGE >= 3:
    a(f"""
v_mov_b32 v8, {LDS_KEY}
v_mov_b32 v9, 0
ds_write_b32 v8, v9
s_barrier
v_and_b32 v7, 15, v0
s_lshl_b32 s60, s3, 4
v_add_u32 v7, s60, v7
v_lshlrev_b32 v7, {CSH}, v7
s_lshl_b32 s66, s6, 1
s_cmp_ge_u32 s65, 224
s_cbranch_scc1 L_down
""")
    a(f"""
s_lshl_b32 s62, s3, 12
s_add_u32 s62, s62, {LDS_GU}
v_lshrrev_b32 v5, 4, v0
v_bfe_u32 v6, v0, 2, 2
v_lshl_add_u32 v6, v5, 5, v6
v_lshlrev_b32 v6, 4, v6
v_and_b32 v4, 1, v0
v_lshl_add_u32 v6, v4, 3, v6
v_and_b32 v4, 2, v0
v_lshl_add_u32 v6, v4, 10, v6
v_add_u32 v6, s62, v6
v_lshlrev_b32 v5, 8, v5
s_lshl_b32 s63, s3, 8
s_add_u32 s63, s63, {LDS_WD}
v_lshl_add_u32 v4, v0, 2, s63
ds_read2st64_b32 v[96:97], v4 offset0:0 offset1:4
ds_read2st64_b32 v[98:99], v4 offset0:8 offset1:12
ds_read2st64_b32 v[100:101], v4 offset0:16 offset1:20
ds_read2st64_b32 v[102:103], v4 offset0:24 offset1:28
v_lshlrev_b32 v12, 3, v0
v_and_b32 v13, 7, v0
v_lshlrev_b32 v11, 2, v13
v_add_u32 v11, {LDS_RED}, v11
s_lshl_b32 s63, s3, 6
s_add_u32 s63, s63, {LDS_RED}
v_and_b32 v10, 48, v0
v_add_u32 v10, s63, v10
s_lshl_b32 s67, s65, 11
s_lshl_b32 s63, s3, 9
s_add_u32 s67, s67, s63
s_add_u32 s67, s67, {WS_PART}
v_mov_b32 v14, s6
s_lshr_b32 s63, s6, 12
v_mov_b32 v15, s63
s_waitcnt lgkmcnt(0)
""")
    for j in range(8):
        a(f"v_lshlrev_b32 v{80+2*j}, 16, v{96+j}\nv_and_b32 v{81+2*j}, 0xffff0000, v{96+j}")
    a("s_barrier\ns_barrier\ns_barrier\ns_barrier")
    stamp(7)
    def cand(pre=None):
        a(f"s_mov_b32 s60, {WS_CAND}")
        if pre: pre()
        poll(lambda: a(f"buffer_load_dwordx2 v[16:17], v7, {S4(SWS)}, s60 offen sc1"), lambda: a("v_cmp_ne_u32 vcc, s6, v17"))
        a(f"""
s_mov_b64 exec, 0xffff
ds_max_u32 v8, v16
s_mov_b64 exec, -1
s_waitcnt lgkmcnt(0)
s_barrier
ds_read_b32 v9, v8
s_waitcnt lgkmcnt(0)
v_readfirstlane_b32 s69, v9
s_andn2_b32 s70, 0x7ff, s69
s_lshr_b32 s60, s70, 5
s_lshl_b32 s60, s60, 12
s_add_u32 s60, s60, s61
""")
    def trr():
        for s in range(4):
            for e in range(2):
                a(f"ds_read_b64_tr_b16 {V(32+4*s+2*e,2)}, v6 offset:{s*128+e*64}")
    a(f"s_lshl_b32 s61, s3, 10\ns_add_u32 s61, s61, {WS_ROWS}")
    cand(trr)
    stamp(8)
    def rl():
        for s in range(4): a(f"buffer_load_dwordx4 {V(48+4*s,4)}, v5, {S4(SWS)}, s60 offen offset:{(s>>1)*128+(s&1)*16} sc1")
        for s in range(2): a(f"buffer_load_dword v{18+s}, v5, {S4(SWS)}, s60 offen offset:{s*128+32} sc1")
    def rc():
        for l in inter(sum3(16, range(48, 56), "s66"), sum3(17, range(56, 63))): a(l)
        a("v_add_u32 v18, v18, v19\nv_add3_u32 v16, v16, v17, v63\nv_cmp_ne_u32 vcc, v16, v18")
    a("L_rows:")
    rl()
    a("s_waitcnt vmcnt(0)")
    for s in range(4): mfma16(64, 32+4*s, 48+4*s, None if s == 0 else 64)
    rc()
    a("s_cbranch_vccnz L_rretry")
    sv = a; a = tail
    a("L_rretry:")
    poll(rl, rc)
    for s in range(4): mfma16(64, 32+4*s, 48+4*s, None if s == 0 else 64)
    a("s_nop 7\ns_branch L_rok")
    a = sv
    a("L_rok:")
    stamp(9)
    a(f"""
s_mov_b32 exec_lo, 0x00010001
s_mov_b32 exec_hi, 0x00010001
ds_write_b128 v10, v[64:67]
s_mov_b64 exec, -1
s_waitcnt lgkmcnt(0)
s_barrier
ds_read2_b32 v[16:17], v11 offset0:0 offset1:8
ds_read2_b32 v[18:19], v11 offset0:16 offset1:24
ds_read2_b32 v[20:21], v11 offset0:32 offset1:40
ds_read2_b32 v[22:23], v11 offset0:48 offset1:56
s_movk_i32 s63, 0xfff
s_waitcnt lgkmcnt(2)
v_pk_add_f32 v[16:17], v[16:17], v[18:19]
s_waitcnt lgkmcnt(0)
v_pk_add_f32 v[20:21], v[20:21], v[22:23]
v_pk_add_f32 v[16:17], v[16:17], v[20:21]
v_cvt_pk_bf16_f32 v20, v16, v17
v_lshlrev_b32 v16, 16, v20
v_mul_f32 v22, 0xbfb8aa3b, v16
v_exp_f32 v22, v22
v_and_b32 v17, 0xffff0000, v20
v_add_f32 v22, 1.0, v22
v_rcp_f32 v22, v22
v_mul_f32 v16, v16, v22
v_cvt_pk_bf16_f32 v16, v16, v16
v_and_b32 v16, 0xffff0000, v16
v_mul_f32 v16, v16, v17
v_cvt_pk_bf16_f32 v16, v16, v16
v_and_b32 v16, 0xffff0000, v16
""")
    for j in range(8):
        for e in range(2):
            op = "v_mul_f32_dpp" if j < 2 else "v_fmac_f32_dpp"
            a(f"{op} v{18+2*(j&1)+e}, v16, v{80+2*j+e} row_newbcast:{j} row_mask:0xf bank_mask:0xf")
    a(f"""
v_pk_add_f32 v[18:19], v[18:19], v[20:21]
v_bfi_b32 v18, s63, v14, v18
v_bfi_b32 v19, s63, v15, v19
buffer_store_dwordx2 v[18:19], v12, {S4(SWS)}, s67 offen sc1
""")
    stamp(10)
    a("s_branch L_cend")
    a(f"""
L_down:
s_sub_u32 s65, s65, 224
s_mul_i32 s67, s3, {56*2048}
s_lshl_b32 s61, s65, 6
s_add_u32 s67, s67, s61
s_add_u32 s12, s67, {WS_PART}
s_add_u32 s13, s12, {16*2048}
s_add_u32 s14, s12, {32*2048}
s_add_u32 s15, s12, {48*2048}
v_lshrrev_b32 v4, 2, v0
v_and_b32 v5, 3, v0
v_lshlrev_b32 v5, 4, v5
v_lshl_add_u32 v4, v4, 11, v5
s_lshr_b32 s68, s6, 12
s_and_b32 s61, s6, 0xfff
s_and_b32 s62, s68, 0xfff
v_mov_b32 v52, s61
v_mov_b32 v53, s62
v_mov_b32 v54, s61
v_mov_b32 v55, s62
v_and_b32 v14, 7, v0
v_lshlrev_b32 v14, 2, v14
v_and_b32 v10, 3, v0
v_lshlrev_b32 v10, 4, v10
v_bfe_u32 v11, v0, 4, 1
v_lshl_add_u32 v10, v11, 3, v10
v_lshrrev_b32 v11, 5, v0
v_lshl_add_u32 v10, v11, 2, v10
s_lshl_b32 s61, s3, 6
s_add_u32 s61, s61, {LDS_RED}
v_add_u32 v10, s61, v10
v_lshlrev_b32 v11, 3, v0
v_add_u32 v11, {LDS_RED}, v11
s_mov_b32 s64, 0xfffff000
s_lshl_b32 s61, s65, 7
s_add_u32 s61, s61, {WS_ROWS}
s_lshl_b32 s65, s65, 5
s_waitcnt lgkmcnt(0)
s_barrier
s_barrier
s_barrier
s_barrier
""")
    stamp(7)
    cand()
    stamp(8)
    def rl2():
        a(f"buffer_load_dword v32, v14, {S4(SWS)}, s60 offen sc1\nbuffer_load_dword v33, v14, {S4(SWS)}, s60 offen offset:48 sc1\nbuffer_load_dwordx2 v[18:19], off, {S4(SWS)}, s60 offset:32 sc1")
    def rc2():
        a("v_add_u32 v16, v32, v33\nv_add_u32 v18, v18, v19")
        a("v_add_u32_dpp v16, v16, v16 quad_perm:[1,0,3,2] row_mask:0xf bank_mask:0xf\nv_add_u32_dpp v16, v16, v16 quad_perm:[2,3,0,1] row_mask:0xf bank_mask:0xf\nv_add_u32_dpp v16, v16, v16 row_half_mirror row_mask:0xf bank_mask:0xf")
        a("v_add_u32 v16, s66, v16\nv_cmp_ne_u32 vcc, v16, v18")
    poll(rl2, rc2)
    a(f"""
s_and_b32 s61, s69, 0xfffff800
s_not_b32 s62, s61
s_xor_b32 s63, s61, 0x80000000
s_cmp_ge_u32 s61, 0x80000000
s_cselect_b32 s61, s63, s62
v_mov_b32 v34, s61
v_cvt_pk_bf16_f32 v34, v34, v34
v_and_b32 v34, 0xffff0000, v34
v_mul_f32 v34, 0xbfb8aa3b, v34
v_exp_f32 v34, v34
v_add_f32 v34, 1.0, v34
v_rcp_f32 v34, v34
v_cvt_pk_bf16_f32 v34, v34, v34
v_and_b32 v34, 0xffff0000, v34
v_lshlrev_b32 v36, 16, v32
v_and_b32 v37, 0xffff0000, v32
v_lshlrev_b32 v38, 16, v33
v_and_b32 v39, 0xffff0000, v33
""")
    def pl():
        for i in range(3): a(f"buffer_load_dwordx4 {V(40+4*i,4)}, v4, {S4(SWS)}, s{12+i} offen sc1")
        a(f"s_mov_b64 exec, 0xffffffff\nbuffer_load_dwordx4 v[52:55], v4, {S4(SWS)}, s15 offen sc1\ns_mov_b64 exec, -1")
    def pc():
        for i in range(4):
            a(f"v_bitop3_b32 v{16+2*i}, v{40+4*i}, v{42+4*i}, s6 bitop3:0x7e\nv_bitop3_b32 v{17+2*i}, v{41+4*i}, v{43+4*i}, s68 bitop3:0x7e")
        a("v_or3_b32 v16, v16, v17, v18\nv_or3_b32 v19, v19, v20, v21\nv_or3_b32 v16, v16, v22, v23\nv_bitop3_b32 v16, v16, v19, s64 bitop3:0x54\nv_cmp_ne_u32 vcc, 0, v16")
    poll(pl, pc)
    stamp(9)
    for r in range(40, 56): a(f"v_and_b32 v{r}, s64, v{r}")
    a(f"""
v_pk_add_f32 v[40:41], v[40:41], v[44:45]
v_pk_add_f32 v[42:43], v[42:43], v[46:47]
v_pk_add_f32 v[48:49], v[48:49], v[52:53]
v_pk_add_f32 v[50:51], v[50:51], v[54:55]
v_pk_add_f32 v[40:41], v[40:41], v[48:49]
v_pk_add_f32 v[42:43], v[42:43], v[50:51]
v_permlane32_swap_b32 v40, v41
v_permlane32_swap_b32 v42, v43
v_add_f32 v40, v40, v41
v_add_f32 v42, v42, v43
v_permlane16_swap_b32 v40, v42
v_add_f32 v40, v40, v42
v_add_f32_dpp v40, v40, v40 row_ror:4 row_mask:0xf bank_mask:0xf
v_add_f32_dpp v40, v40, v40 row_ror:8 row_mask:0xf bank_mask:0xf
ds_write_b32 v10, v40
s_waitcnt lgkmcnt(0)
s_barrier
s_cmp_lg_u32 s3, 0
s_cbranch_scc1 L_dn_other
s_mov_b64 exec, 0xff
ds_read2_b64 v[16:19], v11 offset0:0 offset1:8
ds_read2_b64 v[20:23], v11 offset0:16 offset1:24
s_lshl_b32 s60, s70, 10
s_add_u32 s60, s60, s65
s_waitcnt lgkmcnt(0)
v_pk_add_f32 v[16:17], v[16:17], v[18:19]
v_pk_add_f32 v[20:21], v[20:21], v[22:23]
v_pk_add_f32 v[16:17], v[16:17], v[20:21]
v_cvt_pk_bf16_f32 v20, v16, v17
v_lshlrev_b32 v16, 16, v20
v_and_b32 v17, 0xffff0000, v20
v_pk_mul_f32 v[16:17], v[16:17], v[34:35] op_sel_hi:[1,0]
v_cvt_pk_bf16_f32 v20, v16, v17
v_lshlrev_b32 v16, 16, v20
v_and_b32 v17, 0xffff0000, v20
v_pk_add_f32 v[16:17], v[16:17], v[36:37]
v_cvt_pk_bf16_f32 v20, v16, v17
v_lshlrev_b32 v16, 16, v20
v_and_b32 v17, 0xffff0000, v20
v_pk_add_f32 v[16:17], v[16:17], v[38:39]
v_cvt_pk_bf16_f32 v20, v16, v17
buffer_store_dword v20, v14, {S4(SOUT)}, s60 offen sc1
s_cmp_lg_u32 s65, 0
s_cbranch_scc1 L_dn_other
s_mov_b64 exec, 1
v_mov_b32 v20, s6
buffer_store_dword v20, off, {S4(SWS)}, 0 sc1
L_dn_other:
s_mov_b64 exec, -1
""")
    stamp(10)
    a("L_cend:")
stamp(11)
if ST:
    a("s_cmp_lg_u32 s3, 0\ns_cbranch_scc1 L_end")
    dump_stamps(0)
a("s_endpgm")
lines = a.L + tail.L + ["L_cold:"] + cold.L + ["L_end:"]
lines = fix_hazards(lines)
print(wrap("\n".join(lines), 256, 512, 163840))
```
